```python
import torch

def _softmax(x, axis=-1):
    return torch.softmax(x, dim=axis)
def _gelu(x):
    return torch.nn.functional.gelu(x, approximate="tanh")
def _silu(x):
    return torch.nn.functional.silu(x)
def _sigmoid(x):
    return torch.sigmoid(x)
def _layernorm(x, axis=-1, eps=1e-5):
    m = x.mean(dim=axis, keepdim=True)
    v = x.var(dim=axis, keepdim=True, unbiased=False)
    return (x - m) / torch.sqrt(v + eps)
def _scatter_add(tgt, idx, src, axis=0):
    return tgt.clone().index_add_(axis, idx, src)
def _segment_sum(src, seg, n):
    out = torch.zeros((n,) + src.shape[1:], dtype=src.dtype)
    return out.index_add_(0, seg, src)
def _pad(x, pw):
    flat = tuple(v for pair in reversed(pw) for v in pair)
    return torch.nn.functional.pad(x, flat)

kernel_name = 'parallel_sum__mha_block__swiglu_ffn__prompt'

def setup_inputs():

    _w = (lambda a: (lambda t: t.to(torch.bfloat16) if t.is_floating_point() else t)(torch.as_tensor(a)))
    def _A_setup():
        B, S, D, H = 1, 2048, 1024, 32
        return {
            "x": _w((lambda *s: torch.randn(*s, dtype=torch.bfloat16) * 0.05)(B, S, D)),
            "wqkv": _w((lambda *s: torch.randn(*s, dtype=torch.bfloat16) * 0.05)(D, 3 * D)),
            "wo": _w((lambda *s: torch.randn(*s, dtype=torch.bfloat16) * 0.05)(D, D)),
        }
    _A_in = _A_setup()

    def _B_setup():
        B, S, D, F = 1, 2048, 1024, 3584
        return {
            "x": _w((lambda *s: torch.randn(*s, dtype=torch.bfloat16) * 0.05)(B, S, D)),
            "w_gate": _w((lambda *s: torch.randn(*s, dtype=torch.bfloat16) * 0.05)(D, F)),
            "w_up": _w((lambda *s: torch.randn(*s, dtype=torch.bfloat16) * 0.05)(D, F)),
            "w_down": _w((lambda *s: torch.randn(*s, dtype=torch.bfloat16) * 0.05)(F, D)),
        }
    _B_in = _B_setup()

    return {
        "A_x": _A_in["x"],
        "A_wqkv": _A_in["wqkv"],
        "A_wo": _A_in["wo"],
        "B_x": _B_in["x"],
        "B_w_gate": _B_in["w_gate"],
        "B_w_up": _B_in["w_up"],
        "B_w_down": _B_in["w_down"],
    }

def reference(A_x, A_wqkv, A_wo, B_x, B_w_gate, B_w_up, B_w_down):
    def _A_ref(x, wqkv, wo):
        B, S, D = x.shape
        H = 32
        Dh = D // H
        qkv = (lambda x, *d: x.permute(*d))((x @ wqkv).reshape(B, S, 3, H, Dh), 2, 0, 3, 1, 4)
        q, k, v = qkv[0], qkv[1], qkv[2]
        scores = torch.einsum("bhqd,bhkd->bhqk", q, k) * (Dh ** -0.5)
        p = _softmax(scores, axis=-1)
        o = torch.einsum("bhqk,bhkd->bhqd", p, v)
        return (lambda x, *d: x.permute(*d))(o, 0, 2, 1, 3).reshape(B, S, D) @ wo

    def _B_ref(x, w_gate, w_up, w_down):
        g = _silu(x @ w_gate)
        u = x @ w_up
        return (g * u) @ w_down

    x = A_x
    xn = _layernorm(x, axis=-1)
    return x + _A_ref(xn, A_wqkv, A_wo) + _B_ref(xn, B_w_gate, B_w_up, B_w_down)
```

```python
class Asm:
    def __init__(self):
        self.lines = []
    def __call__(self, s):
        for l in s.strip("\n").split("\n"):
            l = l.strip()
            if l:
                if l.endswith(" lds") and self.lines and self.lines[-1].strip().split(" ")[1:2] == ["m0,"]:
                    self.lines.append("    s_nop 0")
                self.lines.append("    " + l)
    def label(self, l):
        self.lines.append(l + ":")
    def raw(self, s):
        self.lines.append(s)
    def comment(self, s):
        self.lines.append("    ; " + s)
    def text(self):
        return "\n".join(self.lines) + "\n"

def vr(a, n=None):
    if n is None or n == 1:
        return f"v{a}"
    return f"v[{a}:{a+n-1}]"
def sr(a, n=None):
    if n is None or n == 1:
        return f"s{a}"
    return f"s[{a}:{a+n-1}]"

def interleave(main, fill, start=0, end=None):
    n = len(main)
    if end is None:
        end = n
    slots = end - start
    out = []
    fi = 0
    nf = len(fill)
    for i, m in enumerate(main):
        out.append(m)
        if start <= i < end:
            k = i - start + 1
            tgt = (nf * k + slots - 1) // slots
            while fi < min(tgt, nf):
                out.append(fill[fi]); fi += 1
    while fi < nf:
        out.append(fill[fi]); fi += 1
    return out

def kernel_header(a, name):
    a.raw(f".globl {name}\n.p2align 8\n.type {name},@function\n{name}:")

def descriptor(name, vgpr, sgpr=102, accum=None):
    if accum is None:
        accum = (vgpr + 3) // 4 * 4
    return f""".p2align 6
.amdhsa_kernel {name}
  .amdhsa_next_free_vgpr {vgpr}
  .amdhsa_next_free_sgpr {sgpr}
  .amdhsa_accum_offset {accum}
  .amdhsa_group_segment_fixed_size 0
  .amdhsa_kernarg_size 80
  .amdhsa_user_sgpr_count 2
  .amdhsa_user_sgpr_kernarg_segment_ptr 1
  .amdhsa_system_sgpr_workgroup_id_x 1
.end_amdhsa_kernel
"""

WS_XN = 0
WS_QKV = 4 << 20
WS_H = 16 << 20
WS_O = 32 << 20
WS_AF = 40 << 20
WS_CNT = 60 << 20
WS_BYTES = 268435456
KA_X, KA_WQKV, KA_WO, KA_BX, KA_WG, KA_WU, KA_WD, KA_OUT, KA_DBG, KA_WS = [8 * i for i in range(10)]
```

```python
from common import *
import os
GRID = 256
BLOCK = 512
LDS_TOTAL = 65536
LDS_V = 32768
STAMPS = os.environ.get("STAMPS", "0") == "1"
THR = 0x47800000

vQ = 8
vNM = 16
vS = [32, 48]
vP = 64
vPk = 80
vO = 88
vK = [104, 112]
vV = [120, 128]
vL = 136
vT = 138
vFloor = 140
vKa, vKn, vVa, vVn, vKb, vVb = 141, 142, 143, 144, 145, 146
vDK, vDV = 147, 148
vTmp = 150
NVGPR = 160

sK = 8
sV = 12
sWs = 16
sW = 20
sCnt = 21
sThr = 22
sSlot = 23
sDoff = 24
sDslot = 25
sM0K = 26
sM0V = 27
sT = 32

def k_reads(fs, b):
    va = vKa if b < 4 else vKn
    off = (b & 3) * 2048
    return [f"ds_read_b128 {vr(vK[fs],4)}, v{va} offset:{off}",
            f"ds_read_b128 {vr(vK[fs]+4,4)}, v{va+0} offset:{off} ;HI"]

def v_reads(fs, b):
    off = b * 2048
    L = []
    for ks in range(2):
        for h in range(2):
            L.append(f"ds_read_b64_tr_b16 {vr(vV[fs]+4*ks+2*h,2)}, v{vVa} offset:{off + (16*ks+8*h)*64}")
    return L

def qk(sb, fs):
    return [f"v_mfma_f32_32x32x16_bf16 {vr(vS[sb],16)}, {vr(vK[fs],4)}, {vr(vQ,4)}, {vr(vNM,16)}",
            f"v_mfma_f32_32x32x16_bf16 {vr(vS[sb],16)}, {vr(vK[fs]+4,4)}, {vr(vQ+4,4)}, {vr(vS[sb],16)}"]

def pv(fs):
    return [f"v_mfma_f32_32x32x16_bf16 {vr(vO,16)}, {vr(vV[fs],4)}, {vr(vPk,4)}, {vr(vO,16)}",
            f"v_mfma_f32_32x32x16_bf16 {vr(vO,16)}, {vr(vV[fs]+4,4)}, {vr(vPk+4,4)}, {vr(vO,16)}"]

def softmax_part(sb):
    L = []
    S = vS[sb]
    for r in range(16):
        L.append(f"v_exp_f32 v{vP+r}, v{S+r}")
        if r >= 3 and r % 2 == 1:
            k = (r - 3) // 2
            L.append(f"v_cvt_pk_bf16_f32 v{vPk+k}, v{vP+2*k}, v{vP+2*k+1}")
            if k == 1:
                L.append(f"v_pk_add_f32 {vr(vT,2)}, {vr(vP,2)}, {vr(vP+2,2)}")
            elif k > 1:
                L.append(f"v_pk_add_f32 {vr(vT,2)}, {vr(vT,2)}, {vr(vP+2*k,2)}")
    L.append("s_nop 0")
    L.append(f"v_cvt_pk_bf16_f32 v{vPk+7}, v{vP+14}, v{vP+15}")
    L.append(f"v_pk_add_f32 {vr(vT,2)}, {vr(vT,2)}, {vr(vP+14,2)}")
    L.append(f"v_add_f32 v{vT}, v{vT}, v{vT+1}")
    return L

def fix_hi(L):
    return L

def gen_attn(a, name="attn_kernel"):
    kernel_header(a, name)
    T = sT
    a(f"""
    s_cmp_ge_u32 s2, {GRID}
    s_cbranch_scc1 L_at_done
    s_load_dwordx2 s[{T}:{T+1}], s[0:1], {KA_WS}
    v_lshrrev_b32 v1, 6, v0
    v_and_b32 v2, 63, v0
    s_nop 0
    v_readfirstlane_b32 s{sW}, v1
    s_and_b32 s{T+2}, s2, 7
    s_lshl_b32 s{T+2}, s{T+2}, 2
    s_lshr_b32 s{T+3}, s2, 3
    s_and_b32 s{T+4}, s{T+3}, 3
    s_add_u32 s{T+2}, s{T+2}, s{T+4}
    s_lshr_b32 s{T+3}, s{T+3}, 2
    s_waitcnt lgkmcnt(0)
    """)
    sH, sQB = T + 2, T + 3
    a(f"""
    s_mov_b32 s{sWs}, s{T}
    s_and_b32 s{sWs+1}, s{T+1}, 0xffff
    s_mov_b32 s{sWs+2}, {WS_BYTES}
    s_mov_b32 s{sWs+3}, 0x20000
    s_lshl_b32 s{T+4}, s{sH}, 17
    s_add_u32 s{T+5}, s{T+4}, {WS_QKV + 32*131072}
    s_add_u32 s{sK}, s{T}, s{T+5}
    s_addc_u32 s{sK+1}, s{T+1}, 0
    s_and_b32 s{sK+1}, s{sK+1}, 0xffff
    s_mov_b32 s{sK+2}, 131072
    s_mov_b32 s{sK+3}, 0x20000
    s_add_u32 s{T+5}, s{T+4}, {WS_QKV + 64*131072}
    s_add_u32 s{sV}, s{T}, s{T+5}
    s_addc_u32 s{sV+1}, s{T+1}, 0
    s_and_b32 s{sV+1}, s{sV+1}, 0xffff
    s_mov_b32 s{sV+2}, 131072
    s_mov_b32 s{sV+3}, 0x20000
    """)
    a(f"""
    s_lshl_b32 s{T+5}, s{sW}, 10
    v_lshlrev_b32 v3, 4, v2
    v_add_u32 v{vDV}, s{T+5}, v3
    v_and_b32 v3, 3, v2
    v_bfe_u32 v4, v2, 4, 2
    v_xor_b32 v3, v3, v4
    v_lshrrev_b32 v4, 2, v2
    v_lshlrev_b32 v4, 6, v4
    v_lshl_add_u32 v3, v3, 4, v4
    v_add_u32 v{vDK}, s{T+5}, v3
    s_mov_b32 s{sM0K}, s{T+5}
    s_add_u32 s{sM0V}, s{T+5}, {LDS_V}
    s_mov_b32 s{sDoff}, 0
    s_mov_b32 s{sDslot}, 0
    """)
    def dma():
        return [f"s_add_u32 m0, s{sM0K}, s{sDslot}",
                f"s_nop 0\nbuffer_load_dwordx4 v{vDK}, {sr(sK,4)}, s{sDoff} offen lds",
                f"s_add_u32 m0, s{sM0V}, s{sDslot}",
                f"s_nop 0\nbuffer_load_dwordx4 v{vDV}, {sr(sV,4)}, s{sDoff} offen lds",
                f"s_add_u32 s{sDoff}, s{sDoff}, 8192\ns_add_u32 s{sDslot}, s{sDslot}, 8192\ns_and_b32 s{sDslot}, s{sDslot}, 0x7fff"]
    for st in range(2):
        for x in dma(): a(x)
    a(f"""
    v_and_b32 v3, 31, v2
    v_lshrrev_b32 v4, 5, v2
    s_lshl_b32 s{T+5}, s{sQB}, 8
    s_lshl_b32 s{T+6}, s{sW}, 5
    s_add_u32 s{T+5}, s{T+5}, s{T+6}
    v_add_u32 v5, s{T+5}, v3
    v_lshlrev_b32 v6, 6, v5
    v_lshl_add_u32 v6, v4, 4, v6
    s_add_u32 s{T+6}, s{T+4}, {WS_QKV}
    buffer_load_dwordx4 {vr(vQ,4)}, v6, {sr(sWs,4)}, s{T+6} offen
    buffer_load_dwordx4 {vr(vQ+4,4)}, v6, {sr(sWs,4)}, s{T+6} offen offset:32
    """)
    a(f"""
    v_lshrrev_b32 v7, 4, v5
    s_mov_b32 s{T+6}, {144*1024}
    v_mul_lo_u32 v7, v7, s{T+6}
    v_and_b32 v6, 15, v5
    v_lshl_add_u32 v6, v4, 4, v6
    v_lshl_add_u32 v7, v6, 4, v7
    s_lshl_b32 s{T+6}, s{sH}, 10
    v_add_u32 v7, s{T+6}, v7
    """)
    a(f"""
    v_bfe_u32 v5, v3, 2, 2
    v_xor_b32 v5, v5, v4
    v_lshlrev_b32 v6, 6, v3
    v_lshl_add_u32 v{vKb}, v5, 4, v6
    """)
    a(f"""
    v_bfe_u32 v5, v2, 2, 2
    v_lshl_add_u32 v5, v4, 2, v5
    v_lshlrev_b32 v5, 6, v5
    v_bfe_u32 v6, v2, 4, 1
    v_lshl_add_u32 v5, v6, 5, v5
    v_and_b32 v6, 3, v2
    v_lshl_add_u32 v5, v6, 3, v5
    v_add_u32 v{vVb}, {LDS_V}, v5
    v_mov_b32 v{vKa}, v{vKb}
    v_add_u32 v{vKn}, 8192, v{vKb}
    v_mov_b32 v{vVa}, v{vVb}
    s_mov_b32 s{sSlot}, 8192
    """)
    for r in range(16):
        a(f"v_mov_b32 v{vNM+r}, 0")
        a(f"v_mov_b32 v{vO+r}, 0")
    a(f"""
    v_mov_b32 v{vL}, 0
    v_mov_b32 v{vFloor}, 0xff7fffff
    s_mov_b32 s{sThr}, -1.0
    s_mov_b32 s{sCnt}, 16
    s_waitcnt vmcnt(2)
    s_barrier
    """)
    vKa2, vKn2 = 156, 157
    def kr(fs, b):
        va, vb = (vKa, vKa2) if b < 4 else (vKn, vKn2)
        off = (b & 3) * 2048
        return [f"ds_read_b128 {vr(vK[fs],4)}, v{va} offset:{off}",
                f"ds_read_b128 {vr(vK[fs]+4,4)}, v{vb} offset:{off}"]
    a(f"""
    v_xor_b32 v{vKa2}, 32, v{vKa}
    v_xor_b32 v{vKn2}, 32, v{vKn}
    """)
    for x in kr(0, 0) + kr(1, 1): a(x)
    a("s_waitcnt vmcnt(0) lgkmcnt(2)")
    for x in qk(0, 0): a(x)
    a.label("L_at_loop")
    for b in range(4):
        sb = b & 1
        a("s_waitcnt lgkmcnt(0)")
        for x in qk(sb ^ 1, sb ^ 1): a(x)
        fill = v_reads(sb, b) + kr(sb, b + 2)
        if b == 2:
            pass
        sm = softmax_part(sb)
        seq = interleave(sm, fill, 0, 12)
        if b == 1:
            pass
        for x in seq: a(x)
        a(f"v_cmp_lt_f32 vcc, s{sThr}, v{vT}")
        a(f"s_cbranch_vccnz L_at_rare{b}")
        a.label(f"L_at_back{b}")
        a(f"v_add_f32 v{vL}, v{vL}, v{vT}")
        a("s_waitcnt lgkmcnt(2)")
        for x in pv(sb): a(x)
        if b == 1:
            a("s_waitcnt vmcnt(0)")
            a("s_barrier")
            a(f"s_cmp_le_u32 s{sCnt}, 2")
            a("s_cbranch_scc1 L_at_nodma")
            for x in dma(): a(x)
            a.label("L_at_nodma")
    a(f"""
    v_mov_b32 v{vKa}, v{vKn}
    v_mov_b32 v{vKa2}, v{vKn2}
    v_add_u32 v{vVa}, s{sSlot}, v{vVb}
    s_add_u32 s{sSlot}, s{sSlot}, 8192
    s_and_b32 s{sSlot}, s{sSlot}, 0x7fff
    v_add_u32 v{vKn}, s{sSlot}, v{vKb}
    v_xor_b32 v{vKn2}, 32, v{vKn}
    s_sub_u32 s{sCnt}, s{sCnt}, 1
    s_cmp_lg_u32 s{sCnt}, 0
    s_cbranch_scc1 L_at_loop
    s_branch L_at_epi
    """)
    t = vTmp
    for b in range(4):
        sb = b & 1
        S, S2 = vS[sb], vS[sb ^ 1]
        a.label(f"L_at_rare{b}")
        a(f"v_max3_f32 v{t}, v{S}, v{S+1}, v{S+2}")
        for r in range(3, 15, 2):
            a(f"v_max3_f32 v{t}, v{t}, v{S+r}, v{S+r+1}")
        a(f"""
        v_max_f32 v{t}, v{t}, v{S+15}
        v_mov_b32 v{t+1}, v{t}
        s_nop 1
        v_permlane32_swap_b32 v{t}, v{t+1}
        s_nop 1
        v_max3_f32 v{t}, v{t}, v{t+1}, v{vFloor}
        v_max_f32 v{t+1}, 0, v{t}
        v_exp_f32 v{t+1}, -v{t+1}
        v_mov_b32 v{vFloor}, 0
        s_mov_b32 s{sThr}, {THR}
        v_sub_f32 v{vNM}, v{vNM}, v{t}
        """)
        for r in range(1, 16):
            a(f"v_mov_b32 v{vNM+r}, v{vNM}")
        for r in range(16):
            a(f"v_mul_f32 v{vO+r}, v{vO+r}, v{t+1}")
        a(f"v_mul_f32 v{vL}, v{vL}, v{t+1}")
        for r in range(16):
            a(f"v_sub_f32 v{S+r}, v{S+r}, v{t}")
            a(f"v_sub_f32 v{S2+r}, v{S2+r}, v{t}")
        for x in softmax_part(sb): a(x)
        a("s_nop 1")
        a(f"s_branch L_at_back{b}")
    a.label("L_at_epi")
    a(f"""
    s_nop 7
    s_nop 7
    v_mov_b32 v{t}, v{vL}
    s_nop 1
    v_permlane32_swap_b32 v{vL}, v{t}
    s_nop 1
    v_add_f32 v{vL}, v{vL}, v{t}
    v_rcp_f32 v{vL}, v{vL}
    s_nop 0
    """)
    for r in range(16):
        a(f"v_mul_f32 v{vO+r}, v{vO+r}, v{vL}")
    for r in range(8):
        a(f"v_cvt_pk_bf16_f32 v{vPk+r}, v{vO+2*r}, v{vO+2*r+1}")
    a("s_nop 1")
    for k in range(2):
        a(f"v_permlane32_swap_b32 v{vPk+4*k}, v{vPk+4*k+2}")
        a(f"v_permlane32_swap_b32 v{vPk+4*k+1}, v{vPk+4*k+3}")
    a(f"s_mov_b32 s{T+6}, {WS_AF}")
    for k in range(2):
        a(f"buffer_store_dwordx4 {vr(vPk+4*k,4)}, v7, {sr(sWs,4)}, s{T+6} offen offset:{512*k}")
    a.label("L_at_done")
    a("s_endpgm")
    return descriptor(name, NVGPR, 64)
```

```python
from common import *
import os

NW = int(os.environ.get("G1_NW", "8"))
MT = 4 if NW == 8 else 8
PD = int(os.environ.get("G1_PD", "3"))
R = PD + 1
STAMPS = os.environ.get("STAMPS", "0") == "1"
LDS_A = [0, 32768]
LDS_B = [65536, 65536 + 40960]
LDS_TOTAL = 147456
BLOCK = NW * 64
NA = 32 // NW
NB = 40 // NW

vXa = 8
vWa = 10
vAg = 20
vBi = 28
vXF = [32, 32 + 4 * MT]
vWF = 32 + 8 * MT
vEnd = vWF + 4 * R
if NW == 8:
    ACCV = 96
    assert vEnd <= ACCV
    NVGPR, ACCUM = 256, 256
else:
    ACCV = 192
    assert vEnd <= ACCV
    NVGPR, ACCUM = 512, 256

def acc(j, i):
    idx = j * MT + i
    if NW == 8:
        return f"v[{ACCV+4*idx}:{ACCV+4*idx+3}]"
    if idx < 64:
        return f"a[{4*idx}:{4*idx+3}]"
    return f"v[{ACCV+4*(idx-64)}:{ACCV+4*(idx-64)+3}]"

sA = 8
sB = 12
sOffA = 52
sCnt = 53
sW = 54
sM0A = 56
sM0B = 58
sFlag = 60
sDst = 65
sWs = 72
sT = 76

def w_read(stage, s, j, slot):
    off = (LDS_B[stage] - LDS_B[0]) + (32 * s) * 64
    b = vWF + 4 * slot
    return [f"ds_read_b64_tr_b16 {vr(b,2)}, v{vWa+j} offset:{off}",
            f"ds_read_b64_tr_b16 {vr(b+2,2)}, v{vWa+j} offset:{off+256}"]

def x_read(stage, s, i):
    return f"ds_read_b128 {vr(vXF[s]+4*i,4)}, v{vXa+s} offset:{LDS_A[stage]+2048*i}"

def dma(stage):
    L = [f"s_mov_b32 m0, s{sM0A+stage}"]
    for j in range(NA):
        L.append(f"buffer_load_dwordx4 v{vAg+j}, {sr(sA,4)}, s{sOffA} offen lds\n" +
                 ("s_add_u32 m0, m0, 0x400" if j < NA - 1 else f"s_mov_b32 m0, s{sM0B+stage}"))
    for i in range(NB):
        L.append(f"buffer_load_dwordx4 {vr(vBi,2)}, {sr(sB+4*i,4)}, 0 idxen offen lds\n" +
                 "s_add_u32 m0, m0, 0x1000")
    L.append(f"s_add_u32 s{sOffA}, s{sOffA}, 128\nv_add_u32 v{vBi}, 64, v{vBi}")
    return L

class Sched:
    def __init__(self, a):
        self.a = a
        self.q = []
    def issue(self, instr, tag):
        self.a(instr); self.q.append(tag)
    def wait(self, tags):
        last = -1
        for i, t in enumerate(self.q):
            if t in tags: last = i
        if last >= 0:
            n = len(self.q) - 1 - last
            assert n <= 15
            self.a(f"s_waitcnt lgkmcnt({n})")
            self.q = self.q[last + 1:]
    def drain(self):
        self.a("s_waitcnt lgkmcnt(0)"); self.q = []

def group(sc, t, s, j, fills, first=False):
    a = sc.a
    n = (t * 20 + s * 10 + j)
    slot = n % R
    sc.wait({("W", n), ("X", t, s)})
    m = []
    for i in range(MT):
        c = "0" if first else acc(j, i)
        m.append(f"v_mfma_f32_16x16x32_bf16 {acc(j,i)}, {vr(vWF+4*slot,4)}, {vr(vXF[s]+4*i,4)}, {c}")
    seq = interleave([(x, "M") for x in m], fills, 0, MT)
    for ins, tag in seq:
        if tag == "M" or tag is None:
            a(ins)
        else:
            sc.issue(ins, tag)

def wfill(n):
    t, r = divmod(n, 20)
    s, j = divmod(r, 10)
    return [(x, ("W", n)) for x in w_read(t & 1, s, j, n % R)]

def phase(a, t, lead=True, do_dma=True, tail=True, first=False):
    sc = Sched(a)
    order = []
    if lead:
        order += [(t, 1, j) for j in range(10 - PD, 10)]
    if tail:
        order += [(t + 1, 0, j) for j in range(10)] + [(t + 1, 1, j) for j in range(10 - PD)]
    fills = {g: [] for g in order}
    tn = t + 1
    if tail:
        xr = [(x_read(tn & 1, 0, i), ("X", tn, 0)) for i in range(MT)]
        if lead:
            for k, g in enumerate(order[:PD]):
                fills[g] += wfill(tn * 20 + k)
                lo = (MT * k) // PD; hi = (MT * (k + 1)) // PD
                fills[g] += xr[lo:hi]
        else:
            for ins, tag in xr: sc.issue(ins, tag)
            for k in range(PD):
                for ins, tag in wfill(tn * 20 + k): sc.issue(ins, tag)
        for (tt, s, j) in order:
            if tt == tn:
                n = tn * 20 + s * 10 + j
                if s * 10 + j + PD < 20:
                    fills[(tt, s, j)] += wfill(n + PD)
        xr1 = [(x_read(tn & 1, 1, i), ("X", tn, 1)) for i in range(MT)]
        for i in range(MT):
            fills[(tn, 0, 1 + (i * 8) // MT)].append(xr1[i])
    if do_dma:
        d = dma(t & 1)
        ng = min(len(order), 10)
        for k, x in enumerate(d):
            fills[order[(k * ng) // len(d)]].append((x, None))
    for g in order:
        group(sc, g[0], g[1], g[2], fills[g], first=(first and g[1] == 0))
    return sc

def barrier(a):
    a("s_waitcnt vmcnt(0) lgkmcnt(0)")
    a("s_barrier")

def stamp(a, idx):
    if STAMPS:
        if idx == 0:
            a("s_memtime s[4:5]\ns_memrealtime s[6:7]\ns_waitcnt lgkmcnt(0)\ns_mov_b32 s5, s6")
        elif idx < 3:
            a(f"s_memtime s[6:7]\ns_waitcnt lgkmcnt(0)\nv_mov_b32 v{29+idx}, s6")
        else:
            a(f"s_memtime s[6:7]\ns_memrealtime s[{sT+2}:{sT+3}]\ns_waitcnt lgkmcnt(0)")
def stamp_store(a):
    if STAMPS:
        a(f"""
        s_load_dwordx2 s[{sT}:{sT+1}], s[0:1], {KA_DBG}
        s_waitcnt lgkmcnt(0)
        s_cmp_gt_u32 s2, 15
        s_cbranch_scc1 L_g1_nostamp
        s_cmp_lg_u32 s{sW}, 0
        s_cbranch_scc1 L_g1_nostamp
        s_sub_u32 s6, s6, s4
        s_sub_u32 s7, s{sT+2}, s5
        v_subrev_u32 v8, s4, v30
        v_subrev_u32 v9, s4, v31
        v_mov_b32 v10, s6
        v_mov_b32 v11, s7
        s_lshl_b32 s6, s2, 4
        v_mov_b32 v12, s6
        global_store_dwordx4 v12, v[8:11], s[{sT}:{sT+1}]
        """)
        a.label("L_g1_nostamp")

def gen_gemm1(a, name="gemm1_kernel"):
    kernel_header(a, name)
    T = sT
    stamp(a, 0)
    a(f"""
    s_cmp_ge_u32 s2, 256
    s_cbranch_scc1 L_g1_done
    s_load_dwordx2 s[{T}:{T+1}], s[0:1], {KA_WQKV}
    s_load_dwordx2 s[{T+2}:{T+3}], s[0:1], {KA_WG}
    s_load_dwordx2 s[{T+4}:{T+5}], s[0:1], {KA_WU}
    s_load_dwordx2 s[{T+6}:{T+7}], s[0:1], {KA_WS}
    v_lshrrev_b32 v1, 6, v0
    v_and_b32 v2, 63, v0
    s_nop 0
    v_readfirstlane_b32 s{sW}, v1
    s_and_b32 s{T+8}, s2, 7
    s_lshr_b32 s{T+9}, s2, 3
    s_and_b32 s{T+10}, s{T+9}, 7
    s_lshr_b32 s{T+9}, s{T+9}, 3
    s_lshl_b32 s{T+8}, s{T+8}, 2
    s_add_u32 s{T+9}, s{T+9}, s{T+8}
    """)
    sRT, sCT = T + 10, T + 9
    sNGU, sUB, sCB = T + 11, T + 12, T + 13
    a(f"""
    s_cmp_eq_u32 s{sCT}, 9
    s_cselect_b32 s{sNGU}, 2, 5
    s_cselect_b32 s{sUB}, 6, 0
    s_mul_i32 s{sCB}, s{sCT}, 160
    s_sub_u32 s{sCB}, s{sCB}, {1600-64}
    s_cmp_eq_u32 s{sCT}, 9
    s_cselect_b32 s{sCB}, 0, s{sCB}
    s_waitcnt lgkmcnt(0)
    s_mov_b32 s{sWs}, s{T+6}
    s_and_b32 s{sWs+1}, s{T+7}, 0xffff
    s_mov_b32 s{sWs+2}, {WS_BYTES}
    s_mov_b32 s{sWs+3}, 0x20000
    s_lshl_b32 s{T+14}, s{sRT}, 19
    s_add_u32 s{sA}, s{T+6}, s{T+14}
    s_addc_u32 s{sA+1}, s{T+7}, 0
    s_and_b32 s{sA+1}, s{sA+1}, 0xffff
    s_sub_u32 s{sA+2}, 0x400000, s{T+14}
    s_mov_b32 s{sA+3}, 0x20000
    s_mov_b32 s{sOffA}, 0
    """)
    a(f"""
    v_lshrrev_b32 v3, 3, v2
    v_lshrrev_b32 v4, 4, v2
    v_and_b32 v5, 7, v2
    s_mul_i32 s{T+14}, s{sW}, {8*NA}
    """)
    for j in range(NA):
        a(f"""
        v_add_u32 v6, {4*j}, v4
        v_and_b32 v6, 7, v6
        v_xor_b32 v6, v6, v5
        v_add_u32 v7, {8*j}, v3
        v_add_u32 v7, s{T+14}, v7
        v_lshlrev_b32 v7, 11, v7
        v_lshl_add_u32 v{vAg+j}, v6, 4, v7
        """)
    sKQ, sU0 = T + 14, T + 15
    a(f"""
    s_and_b32 s{sKQ}, s{sW}, 3
    s_lshr_b32 s{sU0}, s{sW}, 2
    s_mul_i32 s{sU0}, s{sU0}, 5
    s_lshl_b32 s{T+16}, s{sKQ}, 4
    v_lshrrev_b32 v3, 2, v2
    v_add_u32 v{vBi}, s{T+16}, v3
    v_and_b32 v4, 3, v2
    v_lshrrev_b32 v5, 5, v2
    v_lshlrev_b32 v5, 1, v5
    v_xor_b32 v4, v4, v5
    v_lshlrev_b32 v{vBi+1}, 4, v4
    s_mul_i32 s{T+16}, s{sCT}, 10
    """)
    for i in range(NB):
        u, gu, ur, col, strd = [T + 17 + x for x in range(5)]
        b = sB + 4 * i
        a(f"""
        s_add_u32 s{u}, s{sU0}, {i}
        s_add_u32 s{gu}, s{T+16}, s{u}
        s_sub_u32 s{ur}, s{u}, s{sUB}
        s_sub_u32 s{col}, s{ur}, s{sNGU}
        s_cmp_ge_u32 s{ur}, s{sNGU}
        s_cselect_b32 s{ur}, s{col}, s{ur}
        s_cselect_b32 s{b}, s{T+4}, s{T+2}
        s_cselect_b32 s{b+1}, s{T+5}, s{T+3}
        s_lshl_b32 s{col}, s{ur}, 5
        s_add_u32 s{col}, s{col}, s{sCB}
        s_lshl_b32 s{col}, s{col}, 1
        s_lshl_b32 s{ur}, s{gu}, 6
        s_cmp_lt_u32 s{gu}, 96
        s_cselect_b32 s{col}, s{ur}, s{col}
        s_cselect_b32 s{b}, s{T}, s{b}
        s_cselect_b32 s{b+1}, s{T+1}, s{b+1}
        s_cselect_b32 s{strd}, 6, 7
        s_lshl_b32 s{strd}, s{strd}, 26
        s_add_u32 s{b}, s{b}, s{col}
        s_addc_u32 s{b+1}, s{b+1}, 0
        s_and_b32 s{b+1}, s{b+1}, 0xffff
        s_or_b32 s{b+1}, s{b+1}, s{strd}
        s_mov_b32 s{b+2}, 1024
        s_mov_b32 s{b+3}, 0x20000
        """)
    a(f"""
    s_mul_i32 s{sM0A}, s{sW}, {NA*1024}
    s_add_u32 s{sM0A+1}, s{sM0A}, {LDS_A[1]}
    s_lshl_b32 s{sM0B}, s{sU0}, 12
    s_lshl_b32 s{T+16}, s{sKQ}, 10
    s_add_u32 s{sM0B}, s{sM0B}, s{T+16}
    s_add_u32 s{sM0B+1}, s{sM0B}, {LDS_B[1]}
    s_add_u32 s{sM0B}, s{sM0B}, {LDS_B[0]}
    """)
    for st in range(2):
        for x in dma(st):
            a(x)
            a("s_nop 0")
    sWM, sWN = T + 14, T + 15
    WMN = NW // 2
    a(f"""
    s_and_b32 s{sWM}, s{sW}, {WMN-1}
    s_lshr_b32 s{sWN}, s{sW}, {1 if WMN == 2 else 2}
    v_and_b32 v3, 15, v2
    v_lshrrev_b32 v4, 4, v2
    v_lshrrev_b32 v5, 1, v3
    s_mul_i32 s{T+16}, s{sWM}, {16*MT}
    v_add_u32 v6, s{T+16}, v3
    v_lshlrev_b32 v6, 7, v6
    """)
    for s in range(2):
        a(f"""
        v_add_u32 v7, {4*s}, v4
        v_xor_b32 v7, v7, v5
        v_lshl_add_u32 v{vXa+s}, v7, 4, v6
        """)
    a(f"""
    v_lshrrev_b32 v5, 2, v2
    v_and_b32 v5, 3, v5
    v_lshl_add_u32 v5, v4, 3, v5
    v_lshlrev_b32 v5, 6, v5
    v_and_b32 v6, 3, v2
    v_lshl_add_u32 v5, v6, 3, v5
    v_add_u32 v5, {LDS_B[0]}, v5
    v_and_b32 v6, 1, v4
    v_lshlrev_b32 v6, 5, v6
    s_mul_i32 s{T+16}, s{sCT}, 10
    s_mul_i32 s{T+17}, s{sWN}, 5
    """)
    for j in range(5):
        t, gu, tp, lo, hi, h, x = [T + 18 + k for k in range(7)]
        a(f"""
        s_add_u32 s{t}, s{T+17}, {j}
        s_add_u32 s{gu}, s{T+16}, s{t}
        s_sub_u32 s{tp}, s{t}, s{sUB}
        s_and_b32 s{h}, s{tp}, 1
        s_lshr_b32 s{x}, s{tp}, 1
        s_add_u32 s{x}, s{x}, s{sUB}
        s_lshl_b32 s{lo}, s{x}, 12
        s_add_u32 s{x}, s{x}, s{sNGU}
        s_lshl_b32 s{hi}, s{x}, 12
        s_lshl_b32 s{x}, s{h}, 5
        s_add_u32 s{lo}, s{lo}, s{x}
        s_add_u32 s{hi}, s{hi}, s{x}
        s_lshl_b32 s{x}, s{tp}, 4
        s_add_u32 s{x}, s{x}, s{sCB}
        s_lshr_b32 s{sDst+j}, s{x}, 5
        s_lshl_b32 s{sDst+j}, s{sDst+j}, 10
        s_and_b32 s{x}, s{x}, 16
        s_lshl_b32 s{x}, s{x}, 5
        s_add_u32 s{sDst+j}, s{sDst+j}, s{x}
        s_add_u32 s{sDst+j}, s{sDst+j}, {WS_AF + 32*1024}
        s_lshl_b32 s{x}, s{gu}, 17
        s_add_u32 s{x}, s{x}, {WS_QKV}
        s_lshl_b32 s{t}, s{t}, 12
        s_add_u32 s{h}, s{t}, 32
        s_cmp_lt_u32 s{gu}, 32
        s_cselect_b32 s{sFlag+j}, 2, 1
        s_cmp_lt_u32 s{gu}, 96
        s_cselect_b32 s{sFlag+j}, s{sFlag+j}, 0
        s_cselect_b32 s{sDst+j}, s{x}, s{sDst+j}
        s_cselect_b32 s{lo}, s{t}, s{lo}
        s_cselect_b32 s{hi}, s{h}, s{hi}
        v_xor_b32 v7, s{lo}, v6
        v_add_u32 v{vWa+2*j}, v7, v5
        v_xor_b32 v7, s{hi}, v6
        v_add_u32 v{vWa+2*j+1}, v7, v5
        """)
    a(f"s_waitcnt vmcnt({NA+NB})")
    a("s_barrier")
    stamp(a, 1)
    phase(a, -1, lead=False, do_dma=False, first=True)
    barrier(a)
    a(f"s_mov_b32 s{sCnt}, 7")
    a.label("L_g1_loop")
    phase(a, 0)
    barrier(a)
    phase(a, 1)
    barrier(a)
    a(f"""
    s_sub_u32 s{sCnt}, s{sCnt}, 1
    s_cmp_lg_u32 s{sCnt}, 0
    s_cbranch_scc1 L_g1_loop
    """)
    phase(a, 14, do_dma=False)
    a("s_waitcnt lgkmcnt(0)")
    phase(a, 15, do_dma=False, tail=False)
    stamp(a, 2)
    a(f"""
    s_lshl_b32 s{T+16}, s{sRT}, 8
    s_mul_i32 s{T+17}, s{sWM}, {16*MT}
    s_add_u32 s{T+16}, s{T+16}, s{T+17}
    v_add_u32 v5, s{T+16}, v3
    v_lshlrev_b32 v6, 6, v5
    v_lshl_add_u32 v6, v4, 4, v6
    v_lshrrev_b32 v7, 1, v4
    s_lshr_b32 s{T+16}, s{T+16}, 4
    v_add_u32 v7, s{T+16}, v7
    s_mov_b32 s{T+17}, {144*1024}
    v_mul_lo_u32 v7, v7, s{T+17}
    v_and_b32 v5, 1, v4
    v_lshl_add_u32 v5, v5, 4, v3
    v_lshl_add_u32 v7, v5, 4, v7
    s_mov_b32 s{T+18}, 0xbfb8aa3b
    s_nop 7
    """)
    tmpA = 32
    def accregs(j, i, tmp):
        s = acc(j, i)
        lo = int(s[2:s.index(":")])
        if s[0] == "v":
            return lo
        for r in range(4):
            a(f"v_accvgpr_read_b32 v{tmp+r}, a{lo+r}")
        return tmp
    for j in range(5):
        a(f"""
        s_cmp_eq_u32 s{sFlag+j}, 0
        s_cbranch_scc1 L_g1_eg{j}
        s_cmp_eq_u32 s{sFlag+j}, 2
        s_cselect_b32 s{T+19}, 0x3e8293ee, 1.0
        """)
        for i in range(MT):
            p = 64 + 4 * (i & 3)
            c0 = accregs(2 * j, i, 32)
            c1 = accregs(2 * j + 1, i, 36)
            for r in range(4):
                a(f"v_mul_f32 v{c0+r}, s{T+19}, v{c0+r}")
                a(f"v_mul_f32 v{c1+r}, s{T+19}, v{c1+r}")
            a(f"""
            v_cvt_pk_bf16_f32 v{p}, v{c0}, v{c0+1}
            v_cvt_pk_bf16_f32 v{p+1}, v{c0+2}, v{c0+3}
            v_cvt_pk_bf16_f32 v{p+2}, v{c1}, v{c1+1}
            v_cvt_pk_bf16_f32 v{p+3}, v{c1+2}, v{c1+3}
            s_nop 1
            v_permlane32_swap_b32 v{p}, v{p+2}
            v_permlane32_swap_b32 v{p+1}, v{p+3}
            s_nop 1
            v_permlane16_swap_b32 v{p}, v{p+2}
            v_permlane16_swap_b32 v{p+1}, v{p+3}
            """)
            off = 1024 * i
            if off >= 4096:
                if off % 4096 == 0:
                    a(f"s_add_u32 s{sDst+j}, s{sDst+j}, 4096")
                off %= 4096
            a(f"buffer_store_dwordx4 {vr(p,4)}, v6, {sr(sWs,4)}, s{sDst+j} offen offset:{off}")
        a(f"s_branch L_g1_en{j}")
        a.label(f"L_g1_eg{j}")
        for i2 in range(MT // 2):
            p = 64 + 4 * (i2 & 3)
            t = 48
            regs = []
            for k in range(2):
                g = accregs(2 * j, 2 * i2 + k, 32 + 8 * k)
                u = accregs(2 * j + 1, 2 * i2 + k, 36 + 8 * k)
                regs += [(g + r, u + r) for r in range(4)]
            for r in range(8): a(f"v_mul_f32 v{t+r}, s{T+18}, v{regs[r][0]}")
            for r in range(8): a(f"v_exp_f32 v{t+r}, v{t+r}")
            for r in range(8): a(f"v_add_f32 v{t+r}, 1.0, v{t+r}")
            for r in range(8): a(f"v_rcp_f32 v{t+r}, v{t+r}")
            for r in range(8): a(f"v_mul_f32 v{t+8+r}, v{regs[r][0]}, v{regs[r][1]}")
            for r in range(8): a(f"v_mul_f32 v{t+r}, v{t+r}, v{t+8+r}")
            for r in range(4): a(f"v_cvt_pk_bf16_f32 v{p+r}, v{t+2*r}, v{t+2*r+1}")
            a(f"""
            s_nop 1
            v_permlane32_swap_b32 v{p}, v{p+2}
            v_permlane32_swap_b32 v{p+1}, v{p+3}
            s_nop 1
            v_permlane16_swap_b32 v{p}, v{p+2}
            v_permlane16_swap_b32 v{p+1}, v{p+3}
            """)
            if i2 > 0:
                a(f"s_add_u32 s{sDst+j}, s{sDst+j}, {2*144*1024}")
            a(f"buffer_store_dwordx4 {vr(p,4)}, v7, {sr(sWs,4)}, s{sDst+j} offen")
        a.label(f"L_g1_en{j}")
        a("s_nop 1")
    if STAMPS:
        a("s_waitcnt vmcnt(0)")
    stamp(a, 3)
    stamp_store(a)
    a.label("L_g1_done")
    a("s_endpgm")
    return descriptor(name, NVGPR, 102, ACCUM)
```

```python
from common import *
import os
GRID = 256
BLOCK = 256
LDS_TOTAL = 98304
NSTEP = 36
STAMPS = os.environ.get("STAMPS", "0") == "1"

vAo = 8
vBg = 9
vWa = 13
vXo = 17
vA = 32
vWF = [160, 176]
vTmp = 192
NV = 256
def acc(j, i): return f"a[{(j*8+i)*4}:{(j*8+i)*4+3}]"

sAF = 8
sB = 12
sB2 = 16
sX = 20
sOut = 24
sW = 28
sCnt = 29
sOffA = 30
sOffB = 31
sM0 = 32
sKB = 33
sT = 40

class VQ:
    def __init__(self, a): self.a = a; self.q = []
    def issue(self, ins, tag): self.a(ins); self.q.append(tag)
    def wait(self, tags):
        last = -1
        for i, t in enumerate(self.q):
            if t in tags: last = i
        if last >= 0:
            n = len(self.q) - 1 - last
            self.a(f"s_waitcnt vmcnt({n})")
            self.q = self.q[last+1:]

def a_loads(step):
    slot = step % 4
    L = []
    for i in range(8):
        L.append((f"buffer_load_dwordx4 {vr(vA+32*slot+4*i,4)}, v{vAo+0}, {sr(sAF,4)}, s{sOffA} offen offset:0 ;A{i}", ("A", step), i))
    return L

def gen_gemm2(a, name="gemm2_kernel"):
    kernel_header(a, name)
    T = sT
    a(f"""
    s_cmp_ge_u32 s2, {GRID}
    s_cbranch_scc1 L_g2_done
    s_load_dwordx2 s[{T}:{T+1}], s[0:1], {KA_WS}
    s_load_dwordx2 s[{T+2}:{T+3}], s[0:1], {KA_WO}
    s_load_dwordx2 s[{T+4}:{T+5}], s[0:1], {KA_WD}
    s_load_dwordx2 s[{T+6}:{T+7}], s[0:1], {KA_X}
    s_load_dwordx2 s[{T+8}:{T+9}], s[0:1], {KA_OUT}
    v_lshrrev_b32 v1, 6, v0
    v_and_b32 v2, 63, v0
    s_nop 0
    v_readfirstlane_b32 s{sW}, v1
    s_and_b32 s{T+10}, s2, 7
    s_lshr_b32 s{T+11}, s2, 3
    s_and_b32 s{T+12}, s{T+11}, 1
    s_lshl_b32 s{T+10}, s{T+10}, 1
    s_add_u32 s{T+12}, s{T+12}, s{T+10}
    s_lshr_b32 s{T+11}, s{T+11}, 1
    s_waitcnt lgkmcnt(0)
    """)
    sMT, sNT = T + 12, T + 11
    a(f"""
    s_mul_i32 s{T+13}, s{sMT}, {8*147456}
    s_add_u32 s{T+13}, s{T+13}, {WS_AF}
    s_add_u32 s{sAF}, s{T}, s{T+13}
    s_addc_u32 s{sAF+1}, s{T+1}, 0
    s_and_b32 s{sAF+1}, s{sAF+1}, 0xffff
    s_mov_b32 s{sAF+2}, {8*147456}
    s_mov_b32 s{sAF+3}, 0x20000
    s_mul_i32 s{sOffA}, s{sW}, {NSTEP*1024}
    v_lshlrev_b32 v{vAo}, 4, v2
    """)
    vAi = 200
    for i in range(8):
        a(f"v_add_u32 v{vAi+i}, {i*147456}, v{vAo}")
    a(f"""
    s_lshl_b32 s{T+13}, s{sNT}, 7
    s_add_u32 s{sB}, s{T+2}, s{T+13}
    s_addc_u32 s{sB+1}, s{T+3}, 0
    s_and_b32 s{sB+1}, s{sB+1}, 0xffff
    s_mov_b32 s{sB+2}, {4608*2048}
    s_mov_b32 s{sB+3}, 0x20000
    s_add_u32 s{sB2}, s{T+4}, s{T+13}
    s_addc_u32 s{sB2+1}, s{T+5}, 0
    s_sub_u32 s{sB2}, s{sB2}, {1024*2048}
    s_subb_u32 s{sB2+1}, s{sB2+1}, 0
    s_and_b32 s{sB2+1}, s{sB2+1}, 0xffff
    s_mul_i32 s{sOffB}, s{sW}, {1152*2048}
    s_lshl_b32 s{sM0}, s{sW}, 14
    """)
    a(f"""
    v_lshrrev_b32 v3, 3, v2
    v_bfe_u32 v4, v2, 4, 1
    v_bfe_u32 v5, v2, 1, 2
    v_and_b32 v6, 1, v2
    """)
    for q in range(4):
        a(f"""
        v_or_b32 v7, {(q&1)<<1}, v4
        v_xor_b32 v7, v7, v5
        v_lshl_add_u32 v7, v7, 1, v6
        v_add_u32 v{vTmp}, {8*q}, v3
        v_lshlrev_b32 v{vTmp}, 11, v{vTmp}
        v_lshl_add_u32 v{vBg+q}, v7, 4, v{vTmp}
        """)
    a(f"""
    v_lshrrev_b32 v3, 4, v2
    v_bfe_u32 v4, v2, 2, 2
    v_lshl_add_u32 v5, v3, 3, v4
    v_lshlrev_b32 v5, 7, v5
    v_and_b32 v6, 3, v2
    v_lshl_add_u32 v5, v6, 3, v5
    v_add_u32 v5, s{sM0}, v5
    v_bfe_u32 v6, v2, 3, 1
    v_and_b32 v7, 1, v3
    v_lshl_add_u32 v6, v7, 1, v6
    """)
    for j in range(4):
        a(f"""
        v_xor_b32 v7, {j}, v6
        v_lshl_add_u32 v{vWa+j}, v7, 5, v5
        """)
    vq = VQ(a)
    def b_dma(step):
        slot = step % 4
        L = []
        L.append((f"s_cmp_ge_u32 s{sOffB}, {1024*2048}\ns_cselect_b32 s{sB}, s{sB2}, s{sB}\ns_cselect_b32 s{sB+1}, s{sB2+1}, s{sB+1}\ns_add_u32 m0, s{sM0}, {4096*slot}", None))
        for q in range(4):
            L.append((f"buffer_load_dwordx4 v{vBg+q}, {sr(sB,4)}, s{sOffB} offen lds\n" +
                      ("s_add_u32 m0, m0, 0x400" if q < 3 else f"s_add_u32 s{sOffB}, s{sOffB}, {32*2048}"), ("B", step)))
        return L
    def a_ld(step):
        slot = step % 4
        L = []
        for i in range(8):
            s = f"buffer_load_dwordx4 {vr(vA+32*slot+4*i,4)}, v{vAi+i}, {sr(sAF,4)}, s{sOffA} offen"
            if i == 7: s += f"\ns_add_u32 s{sOffA}, s{sOffA}, 1024"
            L.append((s, ("A", step)))
        return L
    def w_rd(step):
        slot = step % 4; fs = step & 1
        L = []
        for j in range(4):
            L.append(f"ds_read_b64_tr_b16 {vr(vWF[fs]+4*j,2)}, v{vWa+j} offset:{4096*slot}")
            L.append(f"ds_read_b64_tr_b16 {vr(vWF[fs]+4*j+2,2)}, v{vWa+j} offset:{4096*slot+512}")
        return L
    def emit(item):
        ins, tag = item
        if tag is None: a(ins)
        else: vq.issue(ins, tag)
    for st in range(4):
        for it in b_dma(st):
            emit(it); a("s_nop 0")
        if st < 3:
            for it in a_ld(st): emit(it)
    vq.wait({("B", 0)})
    for x in w_rd(0): a(x)
    def step(i, real_i, first=False):
        vq.wait({("A", i), ("B", i + 1)})
        a("s_waitcnt lgkmcnt(0)")
        fills = []
        if real_i + 1 < NSTEP:
            fills += [(x, None) for x in w_rd(i + 1)]
        if real_i + 4 < NSTEP:
            fills += b_dma(i + 4)
        if real_i + 3 < NSTEP:
            fills += a_ld(i + 3)
        m = []
        slot = i % 4; fs = i & 1
        for j in range(4):
            for ii in range(8):
                c = "0" if first else acc(j, ii)
                m.append((f"v_mfma_f32_16x16x32_bf16 {acc(j,ii)}, {vr(vWF[fs]+4*j,4)}, {vr(vA+32*slot+4*ii,4)}, {c}", None))
        for it in interleave(m, fills, 0, 30): emit(it)
    for i in range(4): step(i, i, first=(i == 0))
    a(f"s_mov_b32 s{sCnt}, 7")
    a.label("L_g2_loop")
    q0 = list(vq.q)
    for i in range(4, 8): step(i, i)
    q1 = [(t, s - 4) for (t, s) in vq.q]
    assert q0 == q1, (q0, q1)
    a(f"""
    s_sub_u32 s{sCnt}, s{sCnt}, 1
    s_cmp_lg_u32 s{sCnt}, 0
    s_cbranch_scc1 L_g2_loop
    """)
    vq.q = [(t, s + 24) for (t, s) in vq.q]
    for i in range(32, 36): step(i, i)
    a("s_nop 7\ns_nop 7\ns_barrier")
    a(f"""
    s_lshl_b32 s{T+13}, s{sW}, 15
    v_add_u32 v3, s{T+13}, v{vAo}
    """)
    for d in range(4):
        a(f"""
        s_cmp_eq_u32 s{sW}, {d}
        s_cbranch_scc1 L_g2_skipw{d}
        s_sub_u32 s{T+13}, s{sW}, {d+1}
        s_and_b32 s{T+13}, s{T+13}, 3
        s_lshl_b32 s{T+13}, s{T+13}, 13
        s_add_u32 s{T+13}, s{T+13}, {d*24576}
        v_add_u32 v3, s{T+13}, v{vAo}
        """)
        for j in range(4):
            for ii in range(2):
                a(f"ds_write_b128 v3, {acc(j, 2*d+ii)} offset:{(j*2+ii)*1024}")
        a.label(f"L_g2_skipw{d}")
    a(f"""
    s_mov_b32 s{sX}, s{T+6}
    s_and_b32 s{sX+1}, s{T+7}, 0xffff
    s_mov_b32 s{sX+2}, 0x400000
    s_mov_b32 s{sX+3}, 0x20000
    s_mov_b32 s{sOut}, s{T+8}
    s_and_b32 s{sOut+1}, s{T+9}, 0xffff
    s_mov_b32 s{sOut+2}, 0x400000
    s_mov_b32 s{sOut+3}, 0x20000
    v_and_b32 v4, 15, v2
    v_lshrrev_b32 v5, 4, v2
    s_lshl_b32 s{T+13}, s{sMT}, 7
    s_lshl_b32 s{T+14}, s{sW}, 5
    s_add_u32 s{T+13}, s{T+13}, s{T+14}
    v_add_u32 v4, s{T+13}, v4
    v_lshlrev_b32 v4, 11, v4
    s_lshl_b32 s{T+13}, s{sNT}, 7
    v_add_u32 v4, s{T+13}, v4
    v_lshl_add_u32 v6, v5, 3, v4
    v_lshl_add_u32 v7, v5, 4, v4
    s_mov_b32 s{T+14}, 32768
    """)
    vx = 32
    for ii in range(2):
        for j in range(4):
            so = "0" if ii == 0 else f"s{T+14}"
            a(f"buffer_load_dwordx2 {vr(vx+(j*2+ii)*2,2)}, v6, {sr(sX,4)}, {so} offen offset:{32*j}")
    a("s_waitcnt lgkmcnt(0)\ns_barrier")
    a(f"""
    s_mul_i32 s{T+13}, s{sW}, 24576
    v_add_u32 v3, s{T+13}, v{vAo}
    """)
    vr0 = 64
    for src in range(3):
        for t in range(8):
            a(f"ds_read_b128 {vr(vr0+(src*8+t)*4,4)}, v3 offset:{src*8192+t*1024}")
    vo = 160
    for d in range(4):
        a(f"""
        s_cmp_lg_u32 s{sW}, {d}
        s_cbranch_scc1 L_g2_own{d}
        """)
        for j in range(4):
            for ii in range(2):
                b = ((j * 8) + 2 * d + ii) * 4
                for r in range(4):
                    a(f"v_accvgpr_read_b32 v{vo+(j*2+ii)*4+r}, a{b+r}")
        a.label(f"L_g2_own{d}")
    a("s_waitcnt vmcnt(0) lgkmcnt(0)")
    for t in range(8):
        for r in range(4):
            o = vo + t * 4 + r
            a(f"v_add_f32 v{o}, v{o}, v{vr0+t*4+r}")
            a(f"v_add_f32 v{vr0+32+t*4+r}, v{vr0+32+t*4+r}, v{vr0+64+t*4+r}")
        x0 = vx + 2 * t
        a(f"""
        v_lshlrev_b32 v{vTmp}, 16, v{x0}
        v_and_b32 v{vTmp+1}, 0xffff0000, v{x0}
        v_lshlrev_b32 v{vTmp+2}, 16, v{x0+1}
        v_and_b32 v{vTmp+3}, 0xffff0000, v{x0+1}
        """)
        for r in range(4):
            o = vo + t * 4 + r
            a(f"v_add_f32 v{o}, v{o}, v{vr0+32+t*4+r}")
            a(f"v_add_f32 v{o}, v{o}, v{vTmp+r}")
    for ii in range(2):
        for jp in range(2):
            p = 208 + 4 * (ii * 2 + jp)
            c0 = vo + ((2 * jp) * 2 + ii) * 4
            c1 = vo + ((2 * jp + 1) * 2 + ii) * 4
            so = "0" if ii == 0 else f"s{T+14}"
            a(f"""
            v_cvt_pk_bf16_f32 v{p}, v{c0}, v{c0+1}
            v_cvt_pk_bf16_f32 v{p+1}, v{c0+2}, v{c0+3}
            v_cvt_pk_bf16_f32 v{p+2}, v{c1}, v{c1+1}
            v_cvt_pk_bf16_f32 v{p+3}, v{c1+2}, v{c1+3}
            s_nop 1
            v_permlane32_swap_b32 v{p}, v{p+2}
            v_permlane32_swap_b32 v{p+1}, v{p+3}
            s_nop 1
            v_permlane16_swap_b32 v{p}, v{p+2}
            v_permlane16_swap_b32 v{p+1}, v{p+3}
            buffer_store_dwordx4 {vr(p,4)}, v7, {sr(sOut,4)}, {so} offen offset:{64*jp}
            """)
    a.label("L_g2_done")
    a("s_endpgm")
    return descriptor(name, 384, 64, 256)
```

```python
from common import *

def wave_reduce_add(a, v, tmp_s):
    a(f"""
    s_nop 1
    v_add_f32_dpp v{v}, v{v}, v{v} quad_perm:[1,0,3,2] row_mask:0xf bank_mask:0xf
    s_nop 1
    v_add_f32_dpp v{v}, v{v}, v{v} quad_perm:[2,3,0,1] row_mask:0xf bank_mask:0xf
    s_nop 1
    v_add_f32_dpp v{v}, v{v}, v{v} row_half_mirror row_mask:0xf bank_mask:0xf
    s_nop 1
    v_add_f32_dpp v{v}, v{v}, v{v} row_mirror row_mask:0xf bank_mask:0xf
    s_nop 1
    v_readlane_b32 s{tmp_s}, v{v}, 0
    v_readlane_b32 s{tmp_s+1}, v{v}, 16
    v_readlane_b32 s{tmp_s+2}, v{v}, 32
    v_readlane_b32 s{tmp_s+3}, v{v}, 48
    s_nop 1
    v_mov_b32 v{v}, s{tmp_s}
    v_add_f32 v{v}, s{tmp_s+1}, v{v}
    v_add_f32 v{v}, s{tmp_s+2}, v{v}
    v_add_f32 v{v}, s{tmp_s+3}, v{v}
    """)

def rnd_bf16(a, v):
    a(f"""
    v_cvt_pk_bf16_f32 v{v}, v{v}, v{v}
    v_lshlrev_b32 v{v}, 16, v{v}
    """)

def gen_ln(a, name="ln_kernel"):
    kernel_header(a, name)
    a(f"""
    s_cmp_ge_u32 s2, 512
    s_cbranch_scc1 L_ln_done
    s_load_dwordx2 s[4:5], s[0:1], {KA_X}
    s_load_dwordx2 s[6:7], s[0:1], {KA_WS}
    v_lshrrev_b32 v1, 6, v0
    v_and_b32 v2, 63, v0
    s_lshl_b32 s3, s2, 2
    v_add_u32 v1, s3, v1
    v_lshlrev_b32 v1, 11, v1
    v_lshl_add_u32 v1, v2, 4, v1
    s_waitcnt lgkmcnt(0)
    s_mov_b32 s8, s4
    s_and_b32 s9, s5, 0xffff
    s_mov_b32 s10, 0x400000
    s_mov_b32 s11, 0x20000
    s_add_u32 s12, s6, {WS_XN}
    s_addc_u32 s13, s7, 0
    s_and_b32 s13, s13, 0xffff
    s_mov_b32 s14, 0x400000
    s_mov_b32 s15, 0x20000
    buffer_load_dwordx4 v[4:7], v1, s[8:11], 0 offen
    buffer_load_dwordx4 v[8:11], v1, s[8:11], 0 offen offset:1024
    s_waitcnt vmcnt(0)
    """)
    for i in range(8):
        a(f"v_lshlrev_b32 v{16+2*i}, 16, v{4+i}")
        a(f"v_and_b32 v{17+2*i}, 0xffff0000, v{4+i}")
    a("v_add_f32 v32, v16, v17")
    for i in range(2, 16):
        a(f"v_add_f32 v32, v32, v{16+i}")
    wave_reduce_add(a, 32, 16)
    a("v_mul_f32 v32, 0x3a800000, v32")
    a("v_sub_f32 v34, v16, v32")
    a("v_mul_f32 v33, v34, v34")
    for i in range(1, 16):
        a(f"v_sub_f32 v34, v{16+i}, v32")
        a(f"v_fmac_f32 v33, v34, v34")
    wave_reduce_add(a, 33, 16)
    a("v_mul_f32 v33, 0x3a800000, v33")
    rnd_bf16(a, 32)
    rnd_bf16(a, 33)
    a("v_add_f32 v33, 0x3727c5ac, v33")
    rnd_bf16(a, 33)
    a("v_sqrt_f32 v33, v33")
    a("s_nop 0")
    rnd_bf16(a, 33)
    a("v_rcp_f32 v35, v33")
    a("s_nop 0")
    a("v_fma_f32 v36, -v33, v35, 1.0")
    a("v_fma_f32 v35, v36, v35, v35")
    for i in range(16):
        a(f"v_sub_f32 v{16+i}, v{16+i}, v32")
    for i in range(8):
        a(f"v_cvt_pk_bf16_f32 v{4+i}, v{16+2*i}, v{17+2*i}")
    for i in range(8):
        a(f"v_lshlrev_b32 v{16+2*i}, 16, v{4+i}")
        a(f"v_and_b32 v{17+2*i}, 0xffff0000, v{4+i}")
    for i in range(16):
        a(f"v_mul_f32 v{16+i}, v{16+i}, v35")
    for i in range(8):
        a(f"v_cvt_pk_bf16_f32 v{4+i}, v{16+2*i}, v{17+2*i}")
    a("""
    buffer_store_dwordx4 v[4:7], v1, s[12:15], 0 offen
    buffer_store_dwordx4 v[8:11], v1, s[12:15], 0 offen offset:1024
    """)
    a.label("L_ln_done")
    a("s_endpgm")
    return descriptor(name, 40, 32)
```

```python
import sys
from common import *
from k_ln import gen_ln
from k_gemm1 import gen_gemm1, LDS_TOTAL as G1_LDS, BLOCK as G1_BLOCK

def build(which):
    a = Asm()
    hdr = []
    descs = []
    if "ln" in which:
        hdr.append("; @launch kernel=ln_kernel grid=(512,1,1) block=(256,1,1) lds=0")
        descs.append(gen_ln(a))
    if "g1" in which:
        hdr.append(f"; @launch kernel=gemm1_kernel grid=(256,1,1) block=({G1_BLOCK},1,1) lds={G1_LDS}")
        descs.append(gen_gemm1(a))
    if "at" in which:
        from k_attn import gen_attn, LDS_TOTAL as AT_LDS, GRID as AT_GRID, BLOCK as AT_BLOCK
        hdr.append(f"; @launch kernel=attn_kernel grid=({AT_GRID},1,1) block=({AT_BLOCK},1,1) lds={AT_LDS}")
        descs.append(gen_attn(a))
    if "g2" in which:
        from k_gemm2 import gen_gemm2, LDS_TOTAL as G2_LDS, GRID as G2_GRID, BLOCK as G2_BLOCK
        hdr.append(f"; @launch kernel=gemm2_kernel grid=({G2_GRID},1,1) block=({G2_BLOCK},1,1) lds={G2_LDS}")
        descs.append(gen_gemm2(a))
    out = "; generated by gen/gen.py\n" + "\n".join(hdr) + "\n"
    out += '.amdgcn_target "amdgcn-amd-amdhsa--gfx950"\n.text\n' + a.text()
    out += '.section .rodata,"a"\n' + "".join(descs)
    return out

if __name__ == "__main__":
    which = sys.argv[1].split(",")
    open(sys.argv[2], "w").write(build(which))
```

```python
from common import *
from stamps import *
import os
GRID = 256
BLOCK = 512
LDS_TOTAL = 65536
LDS_V = 32768
STAMPS = os.environ.get("STAMPS", "0") == "1"
THR = 0x47800000
EXPT = os.environ.get('AT_EXPT', '')

vQ = 8
vNM = 16
vS = [32, 48]
vP = 64
vPk = 80
vPk2 = [80, 160]
vO = 88
vK = [104, 112]
vV = [120, 128]
vL = 136
vT = 138
vFloor = 140
vKa, vKn, vVa, vVn, vKb, vVb = 141, 142, 143, 144, 145, 146
vDK, vDV = 147, 148
vTmp = 150
NVGPR = 168

sK = 8
sV = 12
sWs = 16
sW = 20
sCnt = 21
sThr = 22
sSlot = 23
sDoff = 24
sDslot = 25
sM0K = 26
sM0V = 27
sT = 32

def k_reads(fs, b):
    va = vKa if b < 4 else vKn
    off = (b & 3) * 2048
    return [f"ds_read_b128 {vr(vK[fs],4)}, v{va} offset:{off}",
            f"ds_read_b128 {vr(vK[fs]+4,4)}, v{va+0} offset:{off} ;HI"]

def v_reads(fs, b):
    off = b * 2048
    L = []
    for ks in range(2):
        for h in range(2):
            L.append(f"ds_read_b64_tr_b16 {vr(vV[fs]+4*ks+2*h,2)}, v{vVa} offset:{off + (16*ks+8*h)*64}")
    return L

def qk(sb, fs):
    return [f"v_mfma_f32_32x32x16_bf16 {vr(vS[sb],16)}, {vr(vK[fs],4)}, {vr(vQ,4)}, {vr(vNM,16)}",
            f"v_mfma_f32_32x32x16_bf16 {vr(vS[sb],16)}, {vr(vK[fs]+4,4)}, {vr(vQ+4,4)}, {vr(vS[sb],16)}"]

def pv(fs):
    return [f"v_mfma_f32_32x32x16_bf16 {vr(vO,16)}, {vr(vV[fs],4)}, {vr(vPk2[fs],4)}, {vr(vO,16)}",
            f"v_mfma_f32_32x32x16_bf16 {vr(vO,16)}, {vr(vV[fs]+4,4)}, {vr(vPk2[fs]+4,4)}, {vr(vO,16)}"]

class LQ:
    def __init__(self, a): self.a = a; self.q = []
    def issue(self, ins, tag): self.a(ins); self.q.append(tag)
    def wait(self, tags):
        last = -1
        for i, t in enumerate(self.q):
            if t in tags: last = i
        if last >= 0:
            n = len(self.q) - 1 - last
            self.a(f"s_waitcnt lgkmcnt({n})")
            self.q = self.q[last+1:]

def softmax_part(sb):
    L = []
    S = vS[sb]
    vPk = vPk2[sb]
    for r in range(16):
        L.append(f"v_exp_f32 v{vP+r}, v{S+r}")
        if r >= 3 and r % 2 == 1:
            k = (r - 3) // 2
            L.append(f"v_cvt_pk_bf16_f32 v{vPk+k}, v{vP+2*k}, v{vP+2*k+1}")
            if k == 1:
                L.append(f"v_pk_add_f32 {vr(vT,2)}, {vr(vP,2)}, {vr(vP+2,2)}")
            elif k > 1:
                L.append(f"v_pk_add_f32 {vr(vT,2)}, {vr(vT,2)}, {vr(vP+2*k,2)}")
    L.append("s_nop 0")
    L.append(f"v_cvt_pk_bf16_f32 v{vPk+7}, v{vP+14}, v{vP+15}")
    L.append(f"v_pk_add_f32 {vr(vT,2)}, {vr(vT,2)}, {vr(vP+14,2)}")
    L.append(f"v_add_f32 v{vT}, v{vT}, v{vT+1}")
    return L

def fix_hi(L):
    return L

def gen_attn(a, name="attn_kernel"):
    kernel_header(a, name)
    T = sT
    stamp0(a)
    a(f"""
    s_cmp_ge_u32 s2, {GRID}
    s_cbranch_scc1 L_at_done
    s_load_dwordx2 s[{T}:{T+1}], s[0:1], {KA_WS}
    v_lshrrev_b32 v1, 6, v0
    v_and_b32 v2, 63, v0
    s_nop 0
    v_readfirstlane_b32 s{sW}, v1
    s_and_b32 s{T+2}, s2, 7
    s_lshl_b32 s{T+2}, s{T+2}, 2
    s_lshr_b32 s{T+3}, s2, 3
    s_and_b32 s{T+4}, s{T+3}, 3
    s_add_u32 s{T+2}, s{T+2}, s{T+4}
    s_lshr_b32 s{T+3}, s{T+3}, 2
    s_waitcnt lgkmcnt(0)
    """)
    sH, sQB = T + 2, T + 3
    a(f"""
    s_mov_b32 s{sWs}, s{T}
    s_and_b32 s{sWs+1}, s{T+1}, 0xffff
    s_mov_b32 s{sWs+2}, {WS_BYTES}
    s_mov_b32 s{sWs+3}, 0x20000
    s_lshl_b32 s{T+4}, s{sH}, 17
    s_add_u32 s{T+5}, s{T+4}, {WS_QKV + 32*131072}
    s_add_u32 s{sK}, s{T}, s{T+5}
    s_addc_u32 s{sK+1}, s{T+1}, 0
    s_and_b32 s{sK+1}, s{sK+1}, 0xffff
    s_mov_b32 s{sK+2}, 131072
    s_mov_b32 s{sK+3}, 0x20000
    s_add_u32 s{T+5}, s{T+4}, {WS_QKV + 64*131072}
    s_add_u32 s{sV}, s{T}, s{T+5}
    s_addc_u32 s{sV+1}, s{T+1}, 0
    s_and_b32 s{sV+1}, s{sV+1}, 0xffff
    s_mov_b32 s{sV+2}, 131072
    s_mov_b32 s{sV+3}, 0x20000
    """)
    a(f"""
    s_lshl_b32 s{T+5}, s{sW}, 10
    v_lshlrev_b32 v3, 4, v2
    v_add_u32 v{vDV}, s{T+5}, v3
    v_and_b32 v3, 3, v2
    v_bfe_u32 v4, v2, 4, 2
    v_xor_b32 v3, v3, v4
    v_lshrrev_b32 v4, 2, v2
    v_lshlrev_b32 v4, 6, v4
    v_lshl_add_u32 v3, v3, 4, v4
    v_add_u32 v{vDK}, s{T+5}, v3
    s_mov_b32 s{sM0K}, s{T+5}
    s_add_u32 s{sM0V}, s{T+5}, {LDS_V}
    s_mov_b32 s{sDoff}, 0
    s_mov_b32 s{sDslot}, 0
    """)
    def dma():
        return [f"s_add_u32 m0, s{sM0K}, s{sDslot}",
                f"s_nop 0\nbuffer_load_dwordx4 v{vDK}, {sr(sK,4)}, s{sDoff} offen lds",
                f"s_add_u32 m0, s{sM0V}, s{sDslot}",
                f"s_nop 0\nbuffer_load_dwordx4 v{vDV}, {sr(sV,4)}, s{sDoff} offen lds",
                f"s_add_u32 s{sDoff}, s{sDoff}, 8192\ns_add_u32 s{sDslot}, s{sDslot}, 8192\ns_and_b32 s{sDslot}, s{sDslot}, 0x7fff"]
    for st in range(2):
        for x in dma(): a(x)
    a(f"""
    v_and_b32 v3, 31, v2
    v_lshrrev_b32 v4, 5, v2
    s_lshl_b32 s{T+5}, s{sQB}, 8
    s_lshl_b32 s{T+6}, s{sW}, 5
    s_add_u32 s{T+5}, s{T+5}, s{T+6}
    v_add_u32 v5, s{T+5}, v3
    v_lshlrev_b32 v6, 6, v5
    v_lshl_add_u32 v6, v4, 4, v6
    s_add_u32 s{T+6}, s{T+4}, {WS_QKV}
    buffer_load_dwordx4 {vr(vQ,4)}, v6, {sr(sWs,4)}, s{T+6} offen
    buffer_load_dwordx4 {vr(vQ+4,4)}, v6, {sr(sWs,4)}, s{T+6} offen offset:32
    """)
    a(f"""
    v_lshrrev_b32 v7, 4, v5
    s_mov_b32 s{T+6}, {144*1024}
    v_mul_lo_u32 v7, v7, s{T+6}
    v_and_b32 v6, 15, v5
    v_lshl_add_u32 v6, v4, 4, v6
    v_lshl_add_u32 v7, v6, 4, v7
    s_lshl_b32 s{T+6}, s{sH}, 10
    v_add_u32 v7, s{T+6}, v7
    """)
    a(f"""
    v_bfe_u32 v5, v3, 2, 2
    v_xor_b32 v5, v5, v4
    v_lshlrev_b32 v6, 6, v3
    v_lshl_add_u32 v{vKb}, v5, 4, v6
    """)
    a(f"""
    v_bfe_u32 v5, v2, 2, 2
    v_lshl_add_u32 v5, v4, 2, v5
    v_lshlrev_b32 v5, 6, v5
    v_bfe_u32 v6, v2, 4, 1
    v_lshl_add_u32 v5, v6, 5, v5
    v_and_b32 v6, 3, v2
    v_lshl_add_u32 v5, v6, 3, v5
    v_add_u32 v{vVb}, {LDS_V}, v5
    v_mov_b32 v{vKa}, v{vKb}
    v_add_u32 v{vKn}, 8192, v{vKb}
    v_mov_b32 v{vVa}, v{vVb}
    s_mov_b32 s{sSlot}, 8192
    """)
    for r in range(16):
        a(f"v_mov_b32 v{vNM+r}, 0")
        a(f"v_mov_b32 v{vO+r}, 0")
    a(f"""
    v_mov_b32 v{vL}, 0
    v_mov_b32 v{vFloor}, 0xff7fffff
    s_mov_b32 s{sThr}, -1.0
    s_mov_b32 s{sCnt}, 16
    s_waitcnt vmcnt(2)
    s_barrier
    """)
    vKa2, vKn2 = 156, 157
    def kr(fs, b):
        va, vb = (vKa, vKa2) if b < 4 else (vKn, vKn2)
        off = (b & 3) * 2048
        return [f"ds_read_b128 {vr(vK[fs],4)}, v{va} offset:{off}",
                f"ds_read_b128 {vr(vK[fs]+4,4)}, v{vb} offset:{off}"]
    a(f"""
    v_xor_b32 v{vKa2}, 32, v{vKa}
    v_xor_b32 v{vKn2}, 32, v{vKn}
    """)
    for x in kr(0, 0) + kr(1, 1): a(x)
    for r in range(8):
        a(f"v_mov_b32 v{vPk2[1]+r}, 0")
        a(f"v_mov_b32 v{vV[1]+r}, 0")
    a("s_waitcnt vmcnt(0) lgkmcnt(2)")
    for x in qk(0, 0): a(x)
    a("s_waitcnt lgkmcnt(0)\ns_nop 15")
    stampv(a, 158)
    a.label("L_at_loop")
    lq = LQ(a)
    lq.q = [("K", 1), ("K", 1), ("V", -1), ("V", -1), ("V", -1), ("V", -1)]
    def skip(x):
        if 'noread' in EXPT and x.startswith('ds_read'): return True
        if 'noexp' in EXPT and x.startswith('v_exp'): return True
        if 'nocvt' in EXPT and x.startswith('v_cvt'): return True
        if 'nopk' in EXPT and x.startswith('v_pk'): return True
        if 'nomfma' in EXPT and x.startswith('v_mfma'): return True
        return False
    for b in range(4):
        sb = b & 1
        sm = softmax_part(sb)
        q1, q2 = qk(sb ^ 1, sb ^ 1)
        p1, p2 = pv(sb ^ 1)
        krs = kr(sb, b + 2)
        vrs = v_reads(sb, b)
        ins = {0: [("w", ("K", b + 1)), q1], 1: [], 4: [q2], 5: [("r", krs[0], ("K", b + 2))], 6: [("r", krs[1], ("K", b + 2))],
               8: [("w", ("V", b - 1)), p1], 9: [("r", vrs[0], ("V", b))], 10: [("r", vrs[1], ("V", b))],
               12: [p2], 13: [("r", vrs[2], ("V", b))], 14: [("r", vrs[3], ("V", b))]}
        e = 0
        for x in sm:
            if x.startswith("v_exp"):
                for y in ins.get(e, []):
                    if isinstance(y, tuple):
                        if y[0] == "w": lq.wait({y[1]})
                        elif not skip(y[1]): lq.issue(y[1], y[2])
                    elif not skip(y): a(y)
                e += 1
            if not skip(x): a(x)
        a(f"v_cmp_lt_f32 vcc, s{sThr}, v{vT}")
        if 'norare' not in EXPT: a(f"s_cbranch_vccnz L_at_rare{b}")
        a.label(f"L_at_back{b}")
        a(f"v_add_f32 v{vL}, v{vL}, v{vT}")
        if b == 1 and 'nobar' not in EXPT:
            a("s_waitcnt vmcnt(0)")
            a("s_barrier")
            a(f"s_cmp_le_u32 s{sCnt}, 2")
            a("s_cbranch_scc1 L_at_nodma")
            for x in dma(): a(x)
            a.label("L_at_nodma")
    if 'noread' not in EXPT:
        assert lq.q == [("K", 5), ("K", 5), ("V", 3), ("V", 3), ("V", 3), ("V", 3)], lq.q
    a(f"""
    v_mov_b32 v{vKa}, v{vKn}
    v_mov_b32 v{vKa2}, v{vKn2}
    v_add_u32 v{vVa}, s{sSlot}, v{vVb}
    s_add_u32 s{sSlot}, s{sSlot}, 8192
    s_and_b32 s{sSlot}, s{sSlot}, 0x7fff
    v_add_u32 v{vKn}, s{sSlot}, v{vKb}
    v_xor_b32 v{vKn2}, 32, v{vKn}
    s_sub_u32 s{sCnt}, s{sCnt}, 1
    s_cmp_lg_u32 s{sCnt}, 0
    s_cbranch_scc1 L_at_loop
    s_branch L_at_epi
    """)
    t = vTmp
    for b in range(4):
        sb = b & 1
        S, S2 = vS[sb], vS[sb ^ 1]
        a.label(f"L_at_rare{b}")
        a(f"v_max3_f32 v{t}, v{S}, v{S+1}, v{S+2}")
        for r in range(3, 15, 2):
            a(f"v_max3_f32 v{t}, v{t}, v{S+r}, v{S+r+1}")
        a(f"""
        v_max_f32 v{t}, v{t}, v{S+15}
        v_mov_b32 v{t+1}, v{t}
        s_nop 1
        v_permlane32_swap_b32 v{t}, v{t+1}
        s_nop 1
        v_max3_f32 v{t}, v{t}, v{t+1}, v{vFloor}
        v_max_f32 v{t+1}, 0, v{t}
        v_exp_f32 v{t+1}, -v{t+1}
        v_mov_b32 v{vFloor}, 0
        s_mov_b32 s{sThr}, {THR}
        v_sub_f32 v{vNM}, v{vNM}, v{t}
        """)
        for r in range(1, 16):
            a(f"v_mov_b32 v{vNM+r}, v{vNM}")
        a("s_nop 7\ns_nop 7")
        for r in range(16):
            a(f"v_mul_f32 v{vO+r}, v{vO+r}, v{t+1}")
        a(f"v_mul_f32 v{vL}, v{vL}, v{t+1}")
        for r in range(16):
            a(f"v_sub_f32 v{S+r}, v{S+r}, v{t}")
            a(f"v_sub_f32 v{S2+r}, v{S2+r}, v{t}")
        for x in softmax_part(sb): a(x)
        a("s_nop 1")
        a(f"s_branch L_at_back{b}")
    a.label("L_at_epi")
    a("s_waitcnt lgkmcnt(0)")
    for x in pv(1): a(x)
    stampv(a, 159)
    a(f"""
    s_nop 7
    s_nop 7
    v_mov_b32 v{t}, v{vL}
    s_nop 1
    v_permlane32_swap_b32 v{vL}, v{t}
    s_nop 1
    v_add_f32 v{vL}, v{vL}, v{t}
    v_rcp_f32 v{vL}, v{vL}
    s_nop 0
    """)
    for r in range(16):
        a(f"v_mul_f32 v{vO+r}, v{vO+r}, v{vL}")
    for r in range(8):
        a(f"v_cvt_pk_bf16_f32 v{vPk+r}, v{vO+2*r}, v{vO+2*r+1}")
    a("s_nop 1")
    for k in range(2):
        a(f"v_permlane32_swap_b32 v{vPk+4*k}, v{vPk+4*k+2}")
        a(f"v_permlane32_swap_b32 v{vPk+4*k+1}, v{vPk+4*k+3}")
    a(f"s_mov_b32 s{T+6}, {WS_AF}")
    for k in range(2):
        a(f"buffer_store_dwordx4 {vr(vPk+4*k,4)}, v7, {sr(sWs,4)}, s{T+6} offen offset:{512*k}")
    stamp_end(a, 158, 159, sW, "at", 32, 2)
    a.label("L_at_done")
    a("s_endpgm")
    return descriptor(name, NVGPR, 102)
```

```python
from common import *
from stamps import *
import os

NW = int(os.environ.get("G1_NW", "8"))
MT = 4 if NW == 8 else 8
PD = int(os.environ.get("G1_PD", "3"))
R = PD + 1
STAMPS = os.environ.get("STAMPS", "0") == "1"
ST = os.environ.get("G1_ST", "sc1")
LDS_A = [0, 32768]
LDS_B = [65536, 65536 + 40960]
LDS_TOTAL = 147456
BLOCK = NW * 64
NA = 32 // NW
NB = 40 // NW

vXa = 8
vWa = 10
vAg = 20
vBi = 28
vXF = [32, 32 + 4 * MT]
vWF = 32 + 8 * MT
vEnd = vWF + 4 * R
if NW == 8:
    ACCV = 96
    assert vEnd <= ACCV
    NVGPR, ACCUM = 256, 256
else:
    ACCV = 192
    assert vEnd <= ACCV
    NVGPR, ACCUM = 512, 256

def acc(j, i):
    idx = j * MT + i
    if NW == 8:
        return f"v[{ACCV+4*idx}:{ACCV+4*idx+3}]"
    if idx < 64:
        return f"a[{4*idx}:{4*idx+3}]"
    return f"v[{ACCV+4*(idx-64)}:{ACCV+4*(idx-64)+3}]"

sA = 8
sB = 12
sOffA = 52
sCnt = 53
sW = 54
sM0A = 56
sM0B = 58
sFlag = 60
sDst = 65
sWs = 4
sT = 70

def w_read(stage, s, j, slot):
    off = (LDS_B[stage] - LDS_B[0]) + (32 * s) * 64
    b = vWF + 4 * slot
    return [f"ds_read_b64_tr_b16 {vr(b,2)}, v{vWa+j} offset:{off}",
            f"ds_read_b64_tr_b16 {vr(b+2,2)}, v{vWa+j} offset:{off+256}"]

def x_read(stage, s, i):
    return f"ds_read_b128 {vr(vXF[s]+4*i,4)}, v{vXa+s} offset:{LDS_A[stage]+2048*i}"

def dma(stage):
    L = [f"s_mov_b32 m0, s{sM0A+stage}"]
    for j in range(NA):
        L.append(f"buffer_load_dwordx4 v{vAg+j}, {sr(sA,4)}, s{sOffA} offen lds\n" +
                 ("s_add_u32 m0, m0, 0x400" if j < NA - 1 else f"s_mov_b32 m0, s{sM0B+stage}"))
    for i in range(NB):
        L.append(f"buffer_load_dwordx4 {vr(vBi,2)}, {sr(sB+4*i,4)}, 0 idxen offen lds\n" +
                 "s_add_u32 m0, m0, 0x1000")
    L.append(f"s_add_u32 s{sOffA}, s{sOffA}, 128\nv_add_u32 v{vBi}, 64, v{vBi}")
    return L

class Sched:
    def __init__(self, a):
        self.a = a
        self.q = []
    def issue(self, instr, tag):
        self.a(instr); self.q.append(tag)
    def wait(self, tags):
        last = -1
        for i, t in enumerate(self.q):
            if t in tags: last = i
        if last >= 0:
            n = len(self.q) - 1 - last
            assert n <= 15
            self.a(f"s_waitcnt lgkmcnt({n})")
            self.q = self.q[last + 1:]
    def drain(self):
        self.a("s_waitcnt lgkmcnt(0)"); self.q = []

def group(sc, t, s, j, fills, first=False):
    a = sc.a
    n = (t * 20 + s * 10 + j)
    slot = n % R
    sc.wait({("W", n), ("X", t, s)})
    m = []
    for i in range(MT):
        c = "0" if first else acc(j, i)
        m.append(f"v_mfma_f32_16x16x32_bf16 {acc(j,i)}, {vr(vWF+4*slot,4)}, {vr(vXF[s]+4*i,4)}, {c}")
    seq = interleave([(x, "M") for x in m], fills, 0, MT)
    for ins, tag in seq:
        if tag == "M" or tag is None:
            a(ins)
        else:
            sc.issue(ins, tag)

def wfill(n):
    t, r = divmod(n, 20)
    s, j = divmod(r, 10)
    return [(x, ("W", n)) for x in w_read(t & 1, s, j, n % R)]

def phase(a, t, lead=True, do_dma=True, tail=True, first=False):
    sc = Sched(a)
    order = []
    if lead:
        order += [(t, 1, j) for j in range(10 - PD, 10)]
    if tail:
        order += [(t + 1, 0, j) for j in range(10)] + [(t + 1, 1, j) for j in range(10 - PD)]
    fills = {g: [] for g in order}
    tn = t + 1
    if tail:
        xr = [(x_read(tn & 1, 0, i), ("X", tn, 0)) for i in range(MT)]
        if lead:
            for k, g in enumerate(order[:PD]):
                fills[g] += wfill(tn * 20 + k)
                lo = (MT * k) // PD; hi = (MT * (k + 1)) // PD
                fills[g] += xr[lo:hi]
        else:
            for ins, tag in xr: sc.issue(ins, tag)
            for k in range(PD):
                for ins, tag in wfill(tn * 20 + k): sc.issue(ins, tag)
        for (tt, s, j) in order:
            if tt == tn:
                n = tn * 20 + s * 10 + j
                if s * 10 + j + PD < 20:
                    fills[(tt, s, j)] += wfill(n + PD)
        xr1 = [(x_read(tn & 1, 1, i), ("X", tn, 1)) for i in range(MT)]
        for i in range(MT):
            fills[(tn, 0, 1 + (i * 8) // MT)].append(xr1[i])
    if do_dma:
        d = dma(t & 1)
        ng = min(len(order), 10)
        for k, x in enumerate(d):
            fills[order[(k * ng) // len(d)]].append((x, None))
    for g in order:
        group(sc, g[0], g[1], g[2], fills[g], first=(first and g[1] == 0))
    return sc

def barrier(a):
    a("s_waitcnt vmcnt(0) lgkmcnt(0)")
    a("s_barrier")

def gen_gemm1(a, name="gemm1_kernel"):
    kernel_header(a, name)
    T = sT
    stamp0(a)
    a(f"""
    s_cmp_ge_u32 s2, 256
    s_cbranch_scc1 L_g1_done
    s_load_dwordx2 s[{T}:{T+1}], s[0:1], {KA_WQKV}
    s_load_dwordx2 s[{T+2}:{T+3}], s[0:1], {KA_WG}
    s_load_dwordx2 s[{T+4}:{T+5}], s[0:1], {KA_WU}
    s_load_dwordx2 s[{T+6}:{T+7}], s[0:1], {KA_WS}
    v_lshrrev_b32 v1, 6, v0
    v_and_b32 v2, 63, v0
    s_nop 0
    v_readfirstlane_b32 s{sW}, v1
    s_and_b32 s{T+8}, s2, 7
    s_lshr_b32 s{T+9}, s2, 3
    s_and_b32 s{T+10}, s{T+9}, 7
    s_lshr_b32 s{T+9}, s{T+9}, 3
    s_lshl_b32 s{T+8}, s{T+8}, 2
    s_add_u32 s{T+9}, s{T+9}, s{T+8}
    """)
    sRT, sCT = T + 10, T + 9
    sNGU, sUB, sCB = T + 11, T + 12, T + 13
    a(f"""
    s_cmp_eq_u32 s{sCT}, 9
    s_cselect_b32 s{sNGU}, 2, 5
    s_cselect_b32 s{sUB}, 6, 0
    s_mul_i32 s{sCB}, s{sCT}, 160
    s_sub_u32 s{sCB}, s{sCB}, {1600-64}
    s_cmp_eq_u32 s{sCT}, 9
    s_cselect_b32 s{sCB}, 0, s{sCB}
    s_waitcnt lgkmcnt(0)
    s_mov_b32 s{sWs}, s{T+6}
    s_and_b32 s{sWs+1}, s{T+7}, 0xffff
    s_mov_b32 s{sWs+2}, {WS_BYTES}
    s_mov_b32 s{sWs+3}, 0x20000
    s_lshl_b32 s{T+14}, s{sRT}, 19
    s_add_u32 s{sA}, s{T+6}, s{T+14}
    s_addc_u32 s{sA+1}, s{T+7}, 0
    s_and_b32 s{sA+1}, s{sA+1}, 0xffff
    s_sub_u32 s{sA+2}, 0x400000, s{T+14}
    s_mov_b32 s{sA+3}, 0x20000
    s_mov_b32 s{sOffA}, 0
    """)
    a(f"""
    v_lshrrev_b32 v3, 3, v2
    v_lshrrev_b32 v4, 4, v2
    v_and_b32 v5, 7, v2
    s_mul_i32 s{T+14}, s{sW}, {8*NA}
    """)
    for j in range(NA):
        a(f"""
        v_add_u32 v6, {4*j}, v4
        v_and_b32 v6, 7, v6
        v_xor_b32 v6, v6, v5
        v_add_u32 v7, {8*j}, v3
        v_add_u32 v7, s{T+14}, v7
        v_lshlrev_b32 v7, 11, v7
        v_lshl_add_u32 v{vAg+j}, v6, 4, v7
        """)
    sKQ, sU0 = T + 14, T + 15
    a(f"""
    s_and_b32 s{sKQ}, s{sW}, 3
    s_lshr_b32 s{sU0}, s{sW}, 2
    s_mul_i32 s{sU0}, s{sU0}, 5
    s_lshl_b32 s{T+16}, s{sKQ}, 4
    v_lshrrev_b32 v3, 2, v2
    v_add_u32 v{vBi}, s{T+16}, v3
    v_and_b32 v4, 3, v2
    v_lshrrev_b32 v5, 5, v2
    v_lshlrev_b32 v5, 1, v5
    v_xor_b32 v4, v4, v5
    v_lshlrev_b32 v{vBi+1}, 4, v4
    s_mul_i32 s{T+16}, s{sCT}, 10
    """)
    for i in range(NB):
        u, gu, ur, col, strd = [T + 17 + x for x in range(5)]
        b = sB + 4 * i
        a(f"""
        s_add_u32 s{u}, s{sU0}, {i}
        s_add_u32 s{gu}, s{T+16}, s{u}
        s_sub_u32 s{ur}, s{u}, s{sUB}
        s_sub_u32 s{col}, s{ur}, s{sNGU}
        s_cmp_ge_u32 s{ur}, s{sNGU}
        s_cselect_b32 s{ur}, s{col}, s{ur}
        s_cselect_b32 s{b}, s{T+4}, s{T+2}
        s_cselect_b32 s{b+1}, s{T+5}, s{T+3}
        s_lshl_b32 s{col}, s{ur}, 5
        s_add_u32 s{col}, s{col}, s{sCB}
        s_lshl_b32 s{col}, s{col}, 1
        s_lshl_b32 s{ur}, s{gu}, 6
        s_cmp_lt_u32 s{gu}, 96
        s_cselect_b32 s{col}, s{ur}, s{col}
        s_cselect_b32 s{b}, s{T}, s{b}
        s_cselect_b32 s{b+1}, s{T+1}, s{b+1}
        s_cselect_b32 s{strd}, 6, 7
        s_lshl_b32 s{strd}, s{strd}, 26
        s_add_u32 s{b}, s{b}, s{col}
        s_addc_u32 s{b+1}, s{b+1}, 0
        s_and_b32 s{b+1}, s{b+1}, 0xffff
        s_or_b32 s{b+1}, s{b+1}, s{strd}
        s_mov_b32 s{b+2}, 1024
        s_mov_b32 s{b+3}, 0x20000
        """)
    a(f"""
    s_mul_i32 s{sM0A}, s{sW}, {NA*1024}
    s_add_u32 s{sM0A+1}, s{sM0A}, {LDS_A[1]}
    s_lshl_b32 s{sM0B}, s{sU0}, 12
    s_lshl_b32 s{T+16}, s{sKQ}, 10
    s_add_u32 s{sM0B}, s{sM0B}, s{T+16}
    s_add_u32 s{sM0B+1}, s{sM0B}, {LDS_B[1]}
    s_add_u32 s{sM0B}, s{sM0B}, {LDS_B[0]}
    """)
    for st in range(2):
        for x in dma(st):
            a(x)
            a("s_nop 0")
    sWM, sWN = T + 14, T + 15
    WMN = NW // 2
    a(f"""
    s_and_b32 s{sWM}, s{sW}, {WMN-1}
    s_lshr_b32 s{sWN}, s{sW}, {1 if WMN == 2 else 2}
    v_and_b32 v3, 15, v2
    v_lshrrev_b32 v4, 4, v2
    v_lshrrev_b32 v5, 1, v3
    s_mul_i32 s{T+16}, s{sWM}, {16*MT}
    v_add_u32 v6, s{T+16}, v3
    v_lshlrev_b32 v6, 7, v6
    """)
    for s in range(2):
        a(f"""
        v_add_u32 v7, {4*s}, v4
        v_xor_b32 v7, v7, v5
        v_lshl_add_u32 v{vXa+s}, v7, 4, v6
        """)
    a(f"""
    v_lshrrev_b32 v5, 2, v2
    v_and_b32 v5, 3, v5
    v_lshl_add_u32 v5, v4, 3, v5
    v_lshlrev_b32 v5, 6, v5
    v_and_b32 v6, 3, v2
    v_lshl_add_u32 v5, v6, 3, v5
    v_add_u32 v5, {LDS_B[0]}, v5
    v_and_b32 v6, 1, v4
    v_lshlrev_b32 v6, 5, v6
    s_mul_i32 s{T+16}, s{sCT}, 10
    s_mul_i32 s{T+17}, s{sWN}, 5
    """)
    for j in range(5):
        t, gu, tp, lo, hi, h, x = [T + 18 + k for k in range(7)]
        a(f"""
        s_add_u32 s{t}, s{T+17}, {j}
        s_add_u32 s{gu}, s{T+16}, s{t}
        s_sub_u32 s{tp}, s{t}, s{sUB}
        s_and_b32 s{h}, s{tp}, 1
        s_lshr_b32 s{x}, s{tp}, 1
        s_add_u32 s{x}, s{x}, s{sUB}
        s_lshl_b32 s{lo}, s{x}, 12
        s_add_u32 s{x}, s{x}, s{sNGU}
        s_lshl_b32 s{hi}, s{x}, 12
        s_lshl_b32 s{x}, s{h}, 5
        s_add_u32 s{lo}, s{lo}, s{x}
        s_add_u32 s{hi}, s{hi}, s{x}
        s_lshl_b32 s{x}, s{tp}, 4
        s_add_u32 s{x}, s{x}, s{sCB}
        s_lshr_b32 s{sDst+j}, s{x}, 5
        s_lshl_b32 s{sDst+j}, s{sDst+j}, 10
        s_and_b32 s{x}, s{x}, 16
        s_lshl_b32 s{x}, s{x}, 5
        s_add_u32 s{sDst+j}, s{sDst+j}, s{x}
        s_add_u32 s{sDst+j}, s{sDst+j}, {WS_AF + 32*1024}
        s_lshl_b32 s{x}, s{gu}, 17
        s_add_u32 s{x}, s{x}, {WS_QKV}
        s_lshl_b32 s{t}, s{t}, 12
        s_add_u32 s{h}, s{t}, 32
        s_cmp_lt_u32 s{gu}, 32
        s_cselect_b32 s{sFlag+j}, 2, 1
        s_cmp_lt_u32 s{gu}, 96
        s_cselect_b32 s{sFlag+j}, s{sFlag+j}, 0
        s_cselect_b32 s{sDst+j}, s{x}, s{sDst+j}
        s_cselect_b32 s{lo}, s{t}, s{lo}
        s_cselect_b32 s{hi}, s{h}, s{hi}
        v_xor_b32 v7, s{lo}, v6
        v_add_u32 v{vWa+2*j}, v7, v5
        v_xor_b32 v7, s{hi}, v6
        v_add_u32 v{vWa+2*j+1}, v7, v5
        """)
    a(f"s_waitcnt vmcnt({NA+NB})")
    a("s_barrier")
    stampv(a, 30)
    phase(a, -1, lead=False, do_dma=False, first=True)
    barrier(a)
    a(f"s_mov_b32 s{sCnt}, 7")
    a.label("L_g1_loop")
    phase(a, 0)
    barrier(a)
    phase(a, 1)
    barrier(a)
    a(f"""
    s_sub_u32 s{sCnt}, s{sCnt}, 1
    s_cmp_lg_u32 s{sCnt}, 0
    s_cbranch_scc1 L_g1_loop
    """)
    phase(a, 14, do_dma=False)
    a("s_waitcnt lgkmcnt(0)")
    phase(a, 15, do_dma=False, tail=False)
    stampv(a, 31)
    a(f"""
    s_lshl_b32 s{T+16}, s{sRT}, 8
    s_mul_i32 s{T+17}, s{sWM}, {16*MT}
    s_add_u32 s{T+16}, s{T+16}, s{T+17}
    v_add_u32 v5, s{T+16}, v3
    v_lshlrev_b32 v6, 6, v5
    v_lshl_add_u32 v6, v4, 4, v6
    v_lshrrev_b32 v7, 1, v4
    s_lshr_b32 s{T+16}, s{T+16}, 4
    v_add_u32 v7, s{T+16}, v7
    s_mov_b32 s{T+17}, {144*1024}
    v_mul_lo_u32 v7, v7, s{T+17}
    v_and_b32 v5, 1, v4
    v_lshl_add_u32 v5, v5, 4, v3
    v_lshl_add_u32 v7, v5, 4, v7
    s_mov_b32 s{T+18}, 0xbfb8aa3b
    s_nop 7
    """)
    tmpA = 32
    def accregs(j, i, tmp):
        s = acc(j, i)
        lo = int(s[2:s.index(":")])
        if s[0] == "v":
            return lo
        for r in range(4):
            a(f"v_accvgpr_read_b32 v{tmp+r}, a{lo+r}")
        return tmp
    for j in range(5):
        a(f"""
        s_cmp_eq_u32 s{sFlag+j}, 0
        s_cbranch_scc1 L_g1_eg{j}
        s_cmp_eq_u32 s{sFlag+j}, 2
        s_cselect_b32 s{T+19}, 0x3e8293ee, 1.0
        """)
        for i in range(MT):
            p = 64 + 4 * (i & 3)
            c0 = accregs(2 * j, i, 32)
            c1 = accregs(2 * j + 1, i, 36)
            for r in range(4):
                a(f"v_mul_f32 v{c0+r}, s{T+19}, v{c0+r}")
                a(f"v_mul_f32 v{c1+r}, s{T+19}, v{c1+r}")
            a(f"""
            v_cvt_pk_bf16_f32 v{p}, v{c0}, v{c0+1}
            v_cvt_pk_bf16_f32 v{p+1}, v{c0+2}, v{c0+3}
            v_cvt_pk_bf16_f32 v{p+2}, v{c1}, v{c1+1}
            v_cvt_pk_bf16_f32 v{p+3}, v{c1+2}, v{c1+3}
            s_nop 1
            v_permlane32_swap_b32 v{p}, v{p+2}
            v_permlane32_swap_b32 v{p+1}, v{p+3}
            s_nop 1
            v_permlane16_swap_b32 v{p}, v{p+2}
            v_permlane16_swap_b32 v{p+1}, v{p+3}
            """)
            off = 1024 * i
            if off >= 4096:
                if off % 4096 == 0:
                    a(f"s_add_u32 s{sDst+j}, s{sDst+j}, 4096")
                off %= 4096
            a(f"buffer_store_dwordx4 {vr(p,4)}, v6, {sr(sWs,4)}, s{sDst+j} offen offset:{off} {ST}")
        a(f"s_branch L_g1_en{j}")
        a.label(f"L_g1_eg{j}")
        for i2 in range(MT // 2):
            p = 64 + 4 * (i2 & 3)
            t = 48
            regs = []
            for k in range(2):
                g = accregs(2 * j, 2 * i2 + k, 32 + 8 * k)
                u = accregs(2 * j + 1, 2 * i2 + k, 36 + 8 * k)
                regs += [(g + r, u + r) for r in range(4)]
            for r in range(8): a(f"v_mul_f32 v{t+r}, s{T+18}, v{regs[r][0]}")
            for r in range(8): a(f"v_exp_f32 v{t+r}, v{t+r}")
            for r in range(8): a(f"v_add_f32 v{t+r}, 1.0, v{t+r}")
            for r in range(8): a(f"v_rcp_f32 v{t+r}, v{t+r}")
            for r in range(8): a(f"v_mul_f32 v{t+8+r}, v{regs[r][0]}, v{regs[r][1]}")
            for r in range(8): a(f"v_mul_f32 v{t+r}, v{t+r}, v{t+8+r}")
            for r in range(4): a(f"v_cvt_pk_bf16_f32 v{p+r}, v{t+2*r}, v{t+2*r+1}")
            a(f"""
            s_nop 1
            v_permlane32_swap_b32 v{p}, v{p+2}
            v_permlane32_swap_b32 v{p+1}, v{p+3}
            s_nop 1
            v_permlane16_swap_b32 v{p}, v{p+2}
            v_permlane16_swap_b32 v{p+1}, v{p+3}
            """)
            if i2 > 0:
                a(f"s_add_u32 s{sDst+j}, s{sDst+j}, {2*144*1024}")
            a(f"buffer_store_dwordx4 {vr(p,4)}, v7, {sr(sWs,4)}, s{sDst+j} offen {ST}")
        a.label(f"L_g1_en{j}")
        a("s_nop 1")
    stamp_end(a, 30, 31, sW, "g1", 32, 1)
    a.label("L_g1_done")
    a("s_endpgm")
    return descriptor(name, NVGPR, 102, ACCUM)
```

```python
from common import *
from stamps import *
import os
GRID = 256
BLOCK = 256
LDS_TOTAL = 98304
NSTEP = 8
WS_D = 64 << 20
STAMPS = os.environ.get("STAMPS", "0") == "1"

vAo = 8
vBg = 9
vWa = 13
vXo = 17
vA = 32
vWF = [160, 176]
vTmp = 192
NV = 256
def acc(j, i): return f"a[{(j*8+i)*4}:{(j*8+i)*4+3}]"

sAF = 8
sB = 12
sB2 = 16
sX = 20
sOut = 24
sW = 28
sCnt = 29
sOffA = 30
sOffB = 31
sM0 = 32
sKB = 33
sT = 40

class VQ:
    def __init__(self, a): self.a = a; self.q = []
    def issue(self, ins, tag): self.a(ins); self.q.append(tag)
    def wait(self, tags):
        last = -1
        for i, t in enumerate(self.q):
            if t in tags: last = i
        if last >= 0:
            n = len(self.q) - 1 - last
            self.a(f"s_waitcnt vmcnt({n})")
            self.q = self.q[last+1:]

def a_loads(step):
    slot = step % 4
    L = []
    for i in range(8):
        L.append((f"buffer_load_dwordx4 {vr(vA+32*slot+4*i,4)}, v{vAo+0}, {sr(sAF,4)}, s{sOffA} offen offset:0 ;A{i}", ("A", step), i))
    return L

def gen_gemm2(a, name="gemm2_kernel"):
    kernel_header(a, name)
    T = sT
    stamp0(a)
    a(f"""
    s_cmp_ge_u32 s2, {GRID}
    s_cbranch_scc1 L_g2_done
    s_load_dwordx2 s[{T}:{T+1}], s[0:1], {KA_WS}
    s_load_dwordx2 s[{T+2}:{T+3}], s[0:1], {KA_WO}
    s_load_dwordx2 s[{T+4}:{T+5}], s[0:1], {KA_WD}
    s_load_dwordx2 s[{T+6}:{T+7}], s[0:1], {KA_X}
    s_load_dwordx2 s[{T+8}:{T+9}], s[0:1], {KA_OUT}
    v_lshrrev_b32 v1, 6, v0
    v_and_b32 v2, 63, v0
    s_nop 0
    v_readfirstlane_b32 s{sW}, v1
    s_and_b32 s{T+10}, s2, 7
    s_lshr_b32 s{T+11}, s2, 3
    s_and_b32 s{T+12}, s{T+11}, 1
    s_lshl_b32 s{T+10}, s{T+10}, 1
    s_add_u32 s{T+12}, s{T+12}, s{T+10}
    s_lshr_b32 s{T+11}, s{T+11}, 1
    s_waitcnt lgkmcnt(0)
    """)
    sMT, sNT = T + 12, T + 11
    a(f"""
    s_mul_i32 s{T+13}, s{sMT}, {8*147456}
    s_add_u32 s{T+13}, s{T+13}, {WS_AF}
    s_add_u32 s{sAF}, s{T}, s{T+13}
    s_addc_u32 s{sAF+1}, s{T+1}, 0
    s_and_b32 s{sAF+1}, s{sAF+1}, 0xffff
    s_mov_b32 s{sAF+2}, {8*147456}
    s_mov_b32 s{sAF+3}, 0x20000
    s_mul_i32 s{sOffA}, s{sW}, {NSTEP*1024}
    v_lshlrev_b32 v{vAo}, 4, v2
    """)
    vAi = 200
    for i in range(8):
        a(f"v_add_u32 v{vAi+i}, {i*147456}, v{vAo}")
    a(f"""
    s_lshl_b32 s{T+13}, s{sNT}, 7
    s_add_u32 s{sB}, s{T+2}, s{T+13}
    s_addc_u32 s{sB+1}, s{T+3}, 0
    s_and_b32 s{sB+1}, s{sB+1}, 0xffff
    s_sub_u32 s{sB+2}, {1024*2048}, s{T+13}
    s_mov_b32 s{sB+3}, 0x20000
    s_add_u32 s{sB2}, s{T+4}, s{T+13}
    s_addc_u32 s{sB2+1}, s{T+5}, 0
    s_sub_u32 s{sB2}, s{sB2}, {1024*2048}
    s_subb_u32 s{sB2+1}, s{sB2+1}, 0
    s_and_b32 s{sB2+1}, s{sB2+1}, 0xffff
    s_mul_i32 s{sOffB}, s{sW}, {NSTEP*32*2048}
    s_lshl_b32 s{sM0}, s{sW}, 14
    """)
    a(f"""
    v_lshrrev_b32 v3, 3, v2
    v_bfe_u32 v4, v2, 4, 1
    v_bfe_u32 v5, v2, 1, 2
    v_and_b32 v6, 1, v2
    """)
    for q in range(4):
        a(f"""
        v_or_b32 v7, {(q&1)<<1}, v4
        v_xor_b32 v7, v7, v5
        v_lshl_add_u32 v7, v7, 1, v6
        v_add_u32 v{vTmp}, {8*q}, v3
        v_lshlrev_b32 v{vTmp}, 11, v{vTmp}
        v_lshl_add_u32 v{vBg+q}, v7, 4, v{vTmp}
        """)
    a(f"""
    v_lshrrev_b32 v3, 4, v2
    v_bfe_u32 v4, v2, 2, 2
    v_lshl_add_u32 v5, v3, 3, v4
    v_lshlrev_b32 v5, 7, v5
    v_and_b32 v6, 3, v2
    v_lshl_add_u32 v5, v6, 3, v5
    v_add_u32 v5, s{sM0}, v5
    v_bfe_u32 v6, v2, 3, 1
    v_and_b32 v7, 1, v3
    v_lshl_add_u32 v6, v7, 1, v6
    """)
    for j in range(4):
        a(f"""
        v_xor_b32 v7, {j}, v6
        v_lshl_add_u32 v{vWa+j}, v7, 5, v5
        """)
    vq = VQ(a)
    def b_dma(step):
        slot = step % 4
        L = []
        L.append((f"s_add_u32 m0, s{sM0}, {4096*slot}", None))
        for q in range(4):
            L.append((f"buffer_load_dwordx4 v{vBg+q}, {sr(sB,4)}, s{sOffB} offen lds\n" +
                      ("s_add_u32 m0, m0, 0x400" if q < 3 else f"s_add_u32 s{sOffB}, s{sOffB}, {32*2048}"), ("B", step)))
        return L
    def a_ld(step):
        slot = step % 4
        L = []
        for i in range(8):
            s = f"buffer_load_dwordx4 {vr(vA+32*slot+4*i,4)}, v{vAi+i}, {sr(sAF,4)}, s{sOffA} offen"
            if i == 7: s += f"\ns_add_u32 s{sOffA}, s{sOffA}, 1024"
            L.append((s, ("A", step)))
        return L
    def w_rd(step):
        slot = step % 4; fs = step & 1
        L = []
        for j in range(4):
            L.append(f"ds_read_b64_tr_b16 {vr(vWF[fs]+4*j,2)}, v{vWa+j} offset:{4096*slot}")
            L.append(f"ds_read_b64_tr_b16 {vr(vWF[fs]+4*j+2,2)}, v{vWa+j} offset:{4096*slot+512}")
        return L
    def emit(item):
        ins, tag = item
        if tag is None: a(ins)
        else: vq.issue(ins, tag)
    for st in range(4):
        for it in b_dma(st):
            emit(it); a("s_nop 0")
        if st < 3:
            for it in a_ld(st): emit(it)
    vq.wait({("B", 0)})
    for x in w_rd(0): a(x)
    def step(i, real_i, first=False):
        vq.wait({("A", i), ("B", i + 1)})
        a("s_waitcnt lgkmcnt(0)")
        fills = []
        if real_i + 1 < NSTEP:
            fills += [(x, None) for x in w_rd(i + 1)]
        if real_i + 4 < NSTEP:
            fills += b_dma(i + 4)
        if real_i + 3 < NSTEP:
            fills += a_ld(i + 3)
        m = []
        slot = i % 4; fs = i & 1
        for j in range(4):
            for ii in range(8):
                c = "0" if first else acc(j, ii)
                m.append((f"v_mfma_f32_16x16x32_bf16 {acc(j,ii)}, {vr(vWF[fs]+4*j,4)}, {vr(vA+32*slot+4*ii,4)}, {c}", None))
        for it in interleave(m, fills, 0, 30): emit(it)
    stampv(a, 30)
    for i in range(NSTEP): step(i, i, first=(i == 0))
    stampv(a, 31)
    a("s_nop 7\ns_nop 7\ns_barrier")
    a(f"""
    s_lshl_b32 s{T+13}, s{sW}, 15
    v_add_u32 v3, s{T+13}, v{vAo}
    """)
    for d in range(4):
        a(f"""
        s_cmp_eq_u32 s{sW}, {d}
        s_cbranch_scc1 L_g2_skipw{d}
        s_sub_u32 s{T+13}, s{sW}, {d+1}
        s_and_b32 s{T+13}, s{T+13}, 3
        s_lshl_b32 s{T+13}, s{T+13}, 13
        s_add_u32 s{T+13}, s{T+13}, {d*24576}
        v_add_u32 v3, s{T+13}, v{vAo}
        """)
        for j in range(4):
            for ii in range(2):
                a(f"ds_write_b128 v3, {acc(j, 2*d+ii)} offset:{(j*2+ii)*1024}")
        a.label(f"L_g2_skipw{d}")
    a(f"""
    s_add_u32 s{sX}, s{T}, {WS_D}
    s_addc_u32 s{sX+1}, s{T+1}, 0
    s_and_b32 s{sX+1}, s{sX+1}, 0xffff
    s_mov_b32 s{sX+2}, 0x800000
    s_mov_b32 s{sX+3}, 0x20000
    s_mov_b32 s{sOut}, s{T+8}
    s_and_b32 s{sOut+1}, s{T+9}, 0xffff
    s_mov_b32 s{sOut+2}, 0x400000
    s_mov_b32 s{sOut+3}, 0x20000
    v_and_b32 v4, 15, v2
    v_lshrrev_b32 v5, 4, v2
    s_lshl_b32 s{T+13}, s{sMT}, 7
    s_lshl_b32 s{T+14}, s{sW}, 5
    s_add_u32 s{T+13}, s{T+13}, s{T+14}
    v_add_u32 v4, s{T+13}, v4
    v_lshlrev_b32 v4, 11, v4
    s_lshl_b32 s{T+13}, s{sNT}, 7
    v_add_u32 v4, s{T+13}, v4
    v_lshl_add_u32 v6, v5, 3, v4
    v_lshlrev_b32 v6, 1, v6
    v_lshl_add_u32 v7, v5, 4, v4
    s_mov_b32 s{T+14}, 32768
    s_mov_b32 s{T+15}, 65536
    """)
    vx = 32
    for ii in range(2):
        for j in range(4):
            so = "0" if ii == 0 else f"s{T+15}"
            a(f"buffer_load_dwordx4 {vr(vx+(j*2+ii)*4,4)}, v6, {sr(sX,4)}, {so} offen offset:{64*j}")
    a("s_waitcnt lgkmcnt(0)\ns_barrier")
    a(f"""
    s_mul_i32 s{T+13}, s{sW}, 24576
    v_add_u32 v3, s{T+13}, v{vAo}
    """)
    vr0 = 64
    for src in range(3):
        for t in range(8):
            a(f"ds_read_b128 {vr(vr0+(src*8+t)*4,4)}, v3 offset:{src*8192+t*1024}")
    vo = 160
    for d in range(4):
        a(f"""
        s_cmp_lg_u32 s{sW}, {d}
        s_cbranch_scc1 L_g2_own{d}
        """)
        for j in range(4):
            for ii in range(2):
                b = ((j * 8) + 2 * d + ii) * 4
                for r in range(4):
                    a(f"v_accvgpr_read_b32 v{vo+(j*2+ii)*4+r}, a{b+r}")
        a.label(f"L_g2_own{d}")
    a("s_waitcnt vmcnt(0) lgkmcnt(0)")
    for t in range(8):
        for r in range(4):
            o = vo + t * 4 + r
            a(f"v_add_f32 v{o}, v{o}, v{vr0+t*4+r}")
            a(f"v_add_f32 v{vr0+32+t*4+r}, v{vr0+32+t*4+r}, v{vr0+64+t*4+r}")
        for r in range(4):
            o = vo + t * 4 + r
            a(f"v_add_f32 v{o}, v{o}, v{vr0+32+t*4+r}")
            a(f"v_add_f32 v{o}, v{o}, v{vx+4*t+r}")
    for ii in range(2):
        for jp in range(2):
            p = 208 + 4 * (ii * 2 + jp)
            c0 = vo + ((2 * jp) * 2 + ii) * 4
            c1 = vo + ((2 * jp + 1) * 2 + ii) * 4
            so = "0" if ii == 0 else f"s{T+14}"
            a(f"""
            v_cvt_pk_bf16_f32 v{p}, v{c0}, v{c0+1}
            v_cvt_pk_bf16_f32 v{p+1}, v{c0+2}, v{c0+3}
            v_cvt_pk_bf16_f32 v{p+2}, v{c1}, v{c1+1}
            v_cvt_pk_bf16_f32 v{p+3}, v{c1+2}, v{c1+3}
            s_nop 1
            v_permlane32_swap_b32 v{p}, v{p+2}
            v_permlane32_swap_b32 v{p+1}, v{p+3}
            s_nop 1
            v_permlane16_swap_b32 v{p}, v{p+2}
            v_permlane16_swap_b32 v{p+1}, v{p+3}
            buffer_store_dwordx4 {vr(p,4)}, v7, {sr(sOut,4)}, {so} offen offset:{64*jp}
            """)
    stamp_end(a, 30, 31, sW, "g2", 232, 3)
    a.label("L_g2_done")
    a("s_endpgm")
    return descriptor(name, 384, 102, 256)
```

```python
from common import *

def wave_reduce_add(a, v, tmp_s):
    a(f"""
    s_nop 1
    v_add_f32_dpp v{v}, v{v}, v{v} quad_perm:[1,0,3,2] row_mask:0xf bank_mask:0xf
    s_nop 1
    v_add_f32_dpp v{v}, v{v}, v{v} quad_perm:[2,3,0,1] row_mask:0xf bank_mask:0xf
    s_nop 1
    v_add_f32_dpp v{v}, v{v}, v{v} row_half_mirror row_mask:0xf bank_mask:0xf
    s_nop 1
    v_add_f32_dpp v{v}, v{v}, v{v} row_mirror row_mask:0xf bank_mask:0xf
    s_nop 1
    v_readlane_b32 s{tmp_s}, v{v}, 0
    v_readlane_b32 s{tmp_s+1}, v{v}, 16
    v_readlane_b32 s{tmp_s+2}, v{v}, 32
    v_readlane_b32 s{tmp_s+3}, v{v}, 48
    s_nop 1
    v_mov_b32 v{v}, s{tmp_s}
    v_add_f32 v{v}, s{tmp_s+1}, v{v}
    v_add_f32 v{v}, s{tmp_s+2}, v{v}
    v_add_f32 v{v}, s{tmp_s+3}, v{v}
    """)

def rnd_bf16(a, v):
    a(f"""
    v_cvt_pk_bf16_f32 v{v}, v{v}, v{v}
    v_lshlrev_b32 v{v}, 16, v{v}
    """)

def gen_ln(a, name="ln_kernel"):
    kernel_header(a, name)
    a(f"""
    s_cmp_ge_u32 s2, 512
    s_cbranch_scc1 L_ln_done
    s_load_dwordx2 s[4:5], s[0:1], {KA_X}
    s_load_dwordx2 s[6:7], s[0:1], {KA_WS}
    v_lshrrev_b32 v1, 6, v0
    v_and_b32 v2, 63, v0
    s_lshl_b32 s3, s2, 2
    v_add_u32 v1, s3, v1
    v_lshlrev_b32 v1, 11, v1
    v_lshl_add_u32 v1, v2, 4, v1
    s_waitcnt lgkmcnt(0)
    s_mov_b32 s8, s4
    s_and_b32 s9, s5, 0xffff
    s_mov_b32 s10, 0x400000
    s_mov_b32 s11, 0x20000
    s_add_u32 s12, s6, {WS_XN}
    s_addc_u32 s13, s7, 0
    s_and_b32 s13, s13, 0xffff
    s_mov_b32 s14, 0x400000
    s_mov_b32 s15, 0x20000
    buffer_load_dwordx4 v[4:7], v1, s[8:11], 0 offen
    buffer_load_dwordx4 v[8:11], v1, s[8:11], 0 offen offset:1024
    s_waitcnt vmcnt(0)
    """)
    for i in range(8):
        a(f"v_lshlrev_b32 v{16+2*i}, 16, v{4+i}")
        a(f"v_and_b32 v{17+2*i}, 0xffff0000, v{4+i}")
    a("v_add_f32 v32, v16, v17")
    for i in range(2, 16):
        a(f"v_add_f32 v32, v32, v{16+i}")
    wave_reduce_add(a, 32, 16)
    a("v_mul_f32 v32, 0x3a800000, v32")
    a("v_sub_f32 v34, v16, v32")
    a("v_mul_f32 v33, v34, v34")
    for i in range(1, 16):
        a(f"v_sub_f32 v34, v{16+i}, v32")
        a(f"v_fmac_f32 v33, v34, v34")
    wave_reduce_add(a, 33, 16)
    a("v_mul_f32 v33, 0x3a800000, v33")
    rnd_bf16(a, 32)
    rnd_bf16(a, 33)
    a("v_add_f32 v33, 0x3727c5ac, v33")
    rnd_bf16(a, 33)
    a("v_sqrt_f32 v33, v33")
    a("s_nop 0")
    rnd_bf16(a, 33)
    a("v_rcp_f32 v35, v33")
    a("s_nop 0")
    a("v_fma_f32 v36, -v33, v35, 1.0")
    a("v_fma_f32 v35, v36, v35, v35")
    for i in range(16):
        a(f"v_sub_f32 v{16+i}, v{16+i}, v32")
    for i in range(8):
        a(f"v_cvt_pk_bf16_f32 v{4+i}, v{16+2*i}, v{17+2*i}")
    for i in range(8):
        a(f"v_lshlrev_b32 v{16+2*i}, 16, v{4+i}")
        a(f"v_and_b32 v{17+2*i}, 0xffff0000, v{4+i}")
    for i in range(16):
        a(f"v_mul_f32 v{16+i}, v{16+i}, v35")
    for i in range(8):
        a(f"v_cvt_pk_bf16_f32 v{4+i}, v{16+2*i}, v{17+2*i}")
    a("""
    buffer_store_dwordx4 v[4:7], v1, s[12:15], 0 offen
    buffer_store_dwordx4 v[8:11], v1, s[12:15], 0 offen offset:1024
    """)
    a(f"""
    s_cmp_lg_u32 s2, 0
    s_cbranch_scc1 L_ln_done
    v_cmp_gt_u32 vcc, 16, v0
    s_and_saveexec_b64 s[16:17], vcc
    s_cbranch_execz L_ln_done
    v_lshlrev_b32 v1, 8, v0
    v_add_u32 v1, {WS_CNT}, v1
    v_mov_b32 v2, 0
    global_store_dword v1, v2, s[6:7]
    """)
    a.label("L_ln_done")
    a("s_endpgm")
    return descriptor(name, 40, 32)
```

```python
from common import *
from stamps import *
import os
GRID = 768
BLOCK = 256
LDS_TOTAL = 49152
NVGPR = 168
EXPT = os.environ.get('AT_EXPT', '')
THR = 0x47800000
WS_D = 64 << 20

class Q:
    def __init__(self, a, cnt): self.a = a; self.q = []; self.cnt = cnt
    def issue(self, ins, tag): self.a(ins); self.q.append(tag)
    def wait(self, tags):
        last = -1
        for i, t in enumerate(self.q):
            if t in tags: last = i
        if last >= 0:
            n = len(self.q) - 1 - last
            self.a(f"s_waitcnt {self.cnt}({n})")
            self.q = self.q[last+1:]

sW = 20
sT = 40
LDS_V = 24576
vQ = 8; vNM = 16; vS = [32, 48]; vP = 64; vPk2 = [80, 160]; vO = 88
vK = [104, 112]; vV = [120, 128]; vL = 136; vT = 138; vFloor = 140
vKa, vKn, vVa, vKb, vVb = 141, 142, 143, 145, 146
vDK, vDV = 147, 148
vTmp = 150
vKa2, vKn2 = 156, 157
sK = 8; sV = 12; sWs = 16; sCnt = 21; sThr = 22; sSlot = 23; sDoff = 24; sDslot = 25; sM0K = 26; sM0V = 27

def v_reads(fs, b):
    off = b * 2048
    return [f"ds_read_b64_tr_b16 {vr(vV[fs]+4*ks+2*h,2)}, v{vVa} offset:{off + (16*ks+8*h)*64}" for ks in range(2) for h in range(2)]
def kr(fs, b):
    va, vb = (vKa, vKa2) if b < 4 else (vKn, vKn2)
    off = (b & 3) * 2048
    return [f"ds_read_b128 {vr(vK[fs],4)}, v{va} offset:{off}", f"ds_read_b128 {vr(vK[fs]+4,4)}, v{vb} offset:{off}"]
def qk(sb, fs):
    return [f"v_mfma_f32_32x32x16_bf16 {vr(vS[sb],16)}, {vr(vK[fs],4)}, {vr(vQ,4)}, {vr(vNM,16)}",
            f"v_mfma_f32_32x32x16_bf16 {vr(vS[sb],16)}, {vr(vK[fs]+4,4)}, {vr(vQ+4,4)}, {vr(vS[sb],16)}"]
def pv(fs):
    return [f"v_mfma_f32_32x32x16_bf16 {vr(vO,16)}, {vr(vV[fs],4)}, {vr(vPk2[fs],4)}, {vr(vO,16)}",
            f"v_mfma_f32_32x32x16_bf16 {vr(vO,16)}, {vr(vV[fs]+4,4)}, {vr(vPk2[fs]+4,4)}, {vr(vO,16)}"]
def softmax_part(sb):
    L = []; S = vS[sb]; vPk = vPk2[sb]
    def adds(k):
        if k == 1: return [f"v_add_f32 v{vT}, v{vP}, v{vP+2}", f"v_add_f32 v{vT+1}, v{vP+1}, v{vP+3}"]
        return [f"v_add_f32 v{vT}, v{vT}, v{vP+2*k}", f"v_add_f32 v{vT+1}, v{vT+1}, v{vP+2*k+1}"]
    for r in range(16):
        L.append(f"v_exp_f32 v{vP+r}, v{S+r}")
        if r >= 3 and r % 2 == 1:
            k = (r - 3) // 2
            L.append(f"v_cvt_pk_bf16_f32 v{vPk+k}, v{vP+2*k}, v{vP+2*k+1}")
            if k >= 1: L += adds(k)
    L.append(f"v_add_f32 v{vT}, v{vT}, v{vP+14}")
    L.append(f"v_cvt_pk_bf16_f32 v{vPk+7}, v{vP+14}, v{vP+15}")
    L.append(f"v_add_f32 v{vT+1}, v{vT+1}, v{vP+15}")
    L.append(f"v_add_f32 v{vT}, v{vT}, v{vT+1}")
    return L

def attn_role(a):
    T = sT
    sH, sQB = T + 2, T + 3
    a(f"""
    s_mov_b32 s{sWs}, s{T}
    s_and_b32 s{sWs+1}, s{T+1}, 0xffff
    s_mov_b32 s{sWs+2}, {WS_BYTES}
    s_mov_b32 s{sWs+3}, 0x20000
    s_lshl_b32 s{T+4}, s{sH}, 17
    s_add_u32 s{T+5}, s{T+4}, {WS_QKV + 32*131072}
    s_add_u32 s{sK}, s{T}, s{T+5}
    s_addc_u32 s{sK+1}, s{T+1}, 0
    s_and_b32 s{sK+1}, s{sK+1}, 0xffff
    s_mov_b32 s{sK+2}, 131072
    s_mov_b32 s{sK+3}, 0x20000
    s_add_u32 s{T+5}, s{T+4}, {WS_QKV + 64*131072}
    s_add_u32 s{sV}, s{T}, s{T+5}
    s_addc_u32 s{sV+1}, s{T+1}, 0
    s_and_b32 s{sV+1}, s{sV+1}, 0xffff
    s_mov_b32 s{sV+2}, 131072
    s_mov_b32 s{sV+3}, 0x20000
    s_lshl_b32 s{T+5}, s{sW}, 11
    v_lshlrev_b32 v3, 4, v2
    v_add_u32 v{vDV}, s{T+5}, v3
    v_and_b32 v3, 3, v2
    v_bfe_u32 v4, v2, 4, 2
    v_xor_b32 v3, v3, v4
    v_lshrrev_b32 v4, 2, v2
    v_lshlrev_b32 v4, 6, v4
    v_lshl_add_u32 v3, v3, 4, v4
    v_add_u32 v{vDK}, s{T+5}, v3
    s_mov_b32 s{sM0K}, s{T+5}
    s_add_u32 s{sM0V}, s{T+5}, {LDS_V}
    s_mov_b32 s{sDoff}, 0
    s_mov_b32 s{sDslot}, 0
    """)
    def dma():
        return [f"s_add_u32 m0, s{sM0K}, s{sDslot}",
                f"s_nop 0\nbuffer_load_dwordx4 v{vDK}, {sr(sK,4)}, s{sDoff} offen lds",
                f"buffer_load_dwordx4 v{vDK}, {sr(sK,4)}, s{sDoff} offen offset:1024 lds",
                f"s_add_u32 m0, s{sM0V}, s{sDslot}",
                f"s_nop 0\nbuffer_load_dwordx4 v{vDV}, {sr(sV,4)}, s{sDoff} offen lds",
                f"buffer_load_dwordx4 v{vDV}, {sr(sV,4)}, s{sDoff} offen offset:1024 lds",
                f"s_add_u32 s{sDoff}, s{sDoff}, 8192\ns_add_u32 s{sDslot}, s{sDslot}, 8192\ns_cmp_eq_u32 s{sDslot}, 24576\ns_cselect_b32 s{sDslot}, 0, s{sDslot}"]
    for st in range(2):
        for x in dma(): a(x)
    a(f"""
    v_and_b32 v3, 31, v2
    v_lshrrev_b32 v4, 5, v2
    s_lshl_b32 s{T+5}, s{sQB}, 7
    s_lshl_b32 s{T+6}, s{sW}, 5
    s_add_u32 s{T+5}, s{T+5}, s{T+6}
    v_add_u32 v5, s{T+5}, v3
    v_lshlrev_b32 v6, 6, v5
    v_lshl_add_u32 v6, v4, 4, v6
    s_add_u32 s{T+6}, s{T+4}, {WS_QKV}
    buffer_load_dwordx4 {vr(vQ,4)}, v6, {sr(sWs,4)}, s{T+6} offen
    buffer_load_dwordx4 {vr(vQ+4,4)}, v6, {sr(sWs,4)}, s{T+6} offen offset:32
    v_lshrrev_b32 v7, 4, v5
    s_mov_b32 s{T+6}, {144*1024}
    v_mul_lo_u32 v7, v7, s{T+6}
    v_and_b32 v6, 15, v5
    v_lshl_add_u32 v6, v4, 4, v6
    v_lshl_add_u32 v7, v6, 4, v7
    s_lshl_b32 s{T+6}, s{sH}, 10
    v_add_u32 v7, s{T+6}, v7
    v_bfe_u32 v5, v3, 2, 2
    v_xor_b32 v5, v5, v4
    v_lshlrev_b32 v6, 6, v3
    v_lshl_add_u32 v{vKb}, v5, 4, v6
    v_bfe_u32 v5, v2, 2, 2
    v_lshl_add_u32 v5, v4, 2, v5
    v_lshlrev_b32 v5, 6, v5
    v_bfe_u32 v6, v2, 4, 1
    v_lshl_add_u32 v5, v6, 5, v5
    v_and_b32 v6, 3, v2
    v_lshl_add_u32 v5, v6, 3, v5
    v_add_u32 v{vVb}, {LDS_V}, v5
    v_mov_b32 v{vKa}, v{vKb}
    v_add_u32 v{vKn}, 8192, v{vKb}
    v_mov_b32 v{vVa}, v{vVb}
    s_mov_b32 s{sSlot}, 8192
    """)
    for r in range(16):
        a(f"v_mov_b32 v{vNM+r}, 0")
        a(f"v_mov_b32 v{vO+r}, 0")
    a(f"""
    v_mov_b32 v{vL}, 0
    v_mov_b32 v{vFloor}, 0xff7fffff
    s_mov_b32 s{sThr}, -1.0
    s_mov_b32 s{sCnt}, 16
    v_xor_b32 v{vKa2}, 32, v{vKa}
    v_xor_b32 v{vKn2}, 32, v{vKn}
    s_waitcnt vmcnt(6)
    s_barrier
    """)
    for x in kr(0, 0) + kr(1, 1): a(x)
    for r in range(8):
        a(f"v_mov_b32 v{vPk2[1]+r}, 0")
        a(f"v_mov_b32 v{vV[1]+r}, 0")
    a("s_waitcnt vmcnt(0) lgkmcnt(2)")
    for x in qk(0, 0): a(x)
    a("s_waitcnt lgkmcnt(0)\ns_nop 15")
    stampv(a, 158)
    a.label("L_at_loop")
    if 'noprio' not in EXPT:
        a("""
        s_xor_b32 s28, s28, 1
        s_cmp_eq_u32 s28, 0
        s_cbranch_scc1 L_at_p0
        s_setprio 2
        s_branch L_at_p1
        """)
        a.label("L_at_p0")
        a("s_setprio 1")
        a.label("L_at_p1")
    lq = Q(a, "lgkmcnt")
    lq.q = [("K", 1), ("K", 1), ("V", -1), ("V", -1), ("V", -1), ("V", -1)]
    for b in range(4):
        sb = b & 1
        sm = softmax_part(sb)
        q1, q2 = qk(sb ^ 1, sb ^ 1)
        p1, p2 = pv(sb ^ 1)
        krs = kr(sb, b + 2)
        vrs = v_reads(sb, b)
        ins = {0: [("w", ("K", b + 1)), q1], 4: [q2], 5: [("r", krs[0], ("K", b + 2))], 6: [("r", krs[1], ("K", b + 2))],
               8: [("w", ("V", b - 1)), p1], 9: [("r", vrs[0], ("V", b))], 10: [("r", vrs[1], ("V", b))],
               12: [p2], 13: [("r", vrs[2], ("V", b))], 14: [("r", vrs[3], ("V", b))]}
        e = 0
        for x in sm:
            if x.startswith("v_exp"):
                for y in ins.get(e, []):
                    if isinstance(y, tuple):
                        if y[0] == "w": lq.wait({y[1]})
                        else: lq.issue(y[1], y[2])
                    else: a(y)
                e += 1
            a(x)
        a(f"v_cmp_lt_f32 vcc, s{sThr}, v{vT}")
        a(f"s_cbranch_vccnz L_at_rare{b}")
        a.label(f"L_at_back{b}")
        a(f"v_add_f32 v{vL}, v{vL}, v{vT}")
        if b == 1:
            a("s_waitcnt vmcnt(0)")
            a("s_barrier")
            a(f"s_cmp_le_u32 s{sCnt}, 2")
            a("s_cbranch_scc1 L_at_nodma")
            for x in dma(): a(x)
            a.label("L_at_nodma")
    assert lq.q == [("K", 5), ("K", 5), ("V", 3), ("V", 3), ("V", 3), ("V", 3)], lq.q
    a(f"""
    v_mov_b32 v{vKa}, v{vKn}
    v_mov_b32 v{vKa2}, v{vKn2}
    v_add_u32 v{vVa}, s{sSlot}, v{vVb}
    s_add_u32 s{sSlot}, s{sSlot}, 8192
    s_cmp_eq_u32 s{sSlot}, 24576
    s_cselect_b32 s{sSlot}, 0, s{sSlot}
    v_add_u32 v{vKn}, s{sSlot}, v{vKb}
    v_xor_b32 v{vKn2}, 32, v{vKn}
    s_sub_u32 s{sCnt}, s{sCnt}, 1
    s_cmp_lg_u32 s{sCnt}, 0
    s_cbranch_scc1 L_at_loop
    s_branch L_at_epi
    """)
    t = vTmp
    for b in range(4):
        sb = b & 1
        S, S2 = vS[sb], vS[sb ^ 1]
        a.label(f"L_at_rare{b}")
        a(f"v_max3_f32 v{t}, v{S}, v{S+1}, v{S+2}")
        for r in range(3, 15, 2):
            a(f"v_max3_f32 v{t}, v{t}, v{S+r}, v{S+r+1}")
        a(f"""
        v_max_f32 v{t}, v{t}, v{S+15}
        v_mov_b32 v{t+1}, v{t}
        s_nop 1
        v_permlane32_swap_b32 v{t}, v{t+1}
        s_nop 1
        v_max3_f32 v{t}, v{t}, v{t+1}, v{vFloor}
        v_max_f32 v{t+1}, 0, v{t}
        v_exp_f32 v{t+1}, -v{t+1}
        v_mov_b32 v{vFloor}, 0
        s_mov_b32 s{sThr}, {THR}
        v_sub_f32 v{vNM}, v{vNM}, v{t}
        """)
        for r in range(1, 16): a(f"v_mov_b32 v{vNM+r}, v{vNM}")
        a("s_nop 7\ns_nop 7")
        for r in range(16): a(f"v_mul_f32 v{vO+r}, v{vO+r}, v{t+1}")
        a(f"v_mul_f32 v{vL}, v{vL}, v{t+1}")
        for r in range(16):
            a(f"v_sub_f32 v{S+r}, v{S+r}, v{t}")
            a(f"v_sub_f32 v{S2+r}, v{S2+r}, v{t}")
        for x in softmax_part(sb): a(x)
        a("s_nop 1")
        a(f"s_branch L_at_back{b}")
    a.label("L_at_epi")
    a("s_waitcnt lgkmcnt(0)")
    for x in pv(1): a(x)
    stampv(a, 159)
    vPk = vPk2[0]
    a(f"""
    s_nop 7
    s_nop 7
    v_mov_b32 v{t}, v{vL}
    s_nop 1
    v_permlane32_swap_b32 v{vL}, v{t}
    s_nop 1
    v_add_f32 v{vL}, v{vL}, v{t}
    v_rcp_f32 v{vL}, v{vL}
    s_nop 0
    """)
    for r in range(16): a(f"v_mul_f32 v{vO+r}, v{vO+r}, v{vL}")
    for r in range(8): a(f"v_cvt_pk_bf16_f32 v{vPk+r}, v{vO+2*r}, v{vO+2*r+1}")
    a("s_nop 1")
    for k in range(2):
        a(f"v_permlane32_swap_b32 v{vPk+4*k}, v{vPk+4*k+2}")
        a(f"v_permlane32_swap_b32 v{vPk+4*k+1}, v{vPk+4*k+3}")
    a(f"s_mov_b32 s{T+6}, {WS_AF}")
    for k in range(2):
        a(f"buffer_store_dwordx4 {vr(vPk+4*k,4)}, v7, {sr(sWs,4)}, s{T+6} offen offset:{512*k} sc1")
    a(f"""
    s_lshl_b32 s{T+10}, s{sQB}, 8
    s_add_u32 s{T+10}, s{T+10}, {WS_CNT}
    v_mov_b32 v{t}, s{T+10}
    v_mov_b32 v{t+1}, 1
    s_waitcnt vmcnt(0) lgkmcnt(0)
    s_barrier
    s_cmp_lg_u32 s{sW}, 0
    s_cbranch_scc1 L_at_nosig
    s_mov_b64 exec, 1
    global_atomic_add v{t}, v{t+1}, s[{T}:{T+1}] sc1
    s_mov_b64 exec, -1
    """)
    a.label("L_at_nosig")
    stamp_end(a, 158, 159, sW, "at", 32, 2)
    a("s_endpgm")

NST1 = 56
NST = 72
dAcc = 8
NAS = 4
dA = 72
dW = [136, 152]
dAo = 0
dBg = 2
dWa = 4
dsAF = 8; dsB = 12; dsX = 16; dsO = 24; dCnt = 21; dOffA = 22; dOffB = 23; dM0 = 28; dsWo = 30; dsDbg = 32

def dn_role(a):
    T = sT
    sMT, sNT = T + 2, T + 3
    a("v_mov_b32 v72, v2")
    a(f"""
    s_load_dwordx2 s[{T+4}:{T+5}], s[0:1], {KA_WD}
    s_load_dwordx2 s[{T+6}:{T+7}], s[0:1], {KA_X}
    s_load_dwordx2 s[{T+12}:{T+13}], s[0:1], {KA_WO}
    s_load_dwordx2 s[{T+14}:{T+15}], s[0:1], {KA_OUT}
    s_load_dwordx2 s[{dsDbg}:{dsDbg+1}], s[0:1], {KA_DBG}
    s_and_b32 s{T+8}, s{sW}, 1
    s_lshr_b32 s{T+9}, s{sW}, 1
    s_lshl_b32 s{T+10}, s{sMT}, 3
    s_lshl_b32 s{T+11}, s{T+8}, 2
    s_add_u32 s{T+10}, s{T+10}, s{T+11}
    s_mul_i32 s{T+11}, s{T+10}, 147456
    s_add_u32 s{T+11}, s{T+11}, {WS_AF}
    s_add_u32 s{dsAF}, s{T}, s{T+11}
    s_addc_u32 s{dsAF+1}, s{T+1}, 0
    s_and_b32 s{dsAF+1}, s{dsAF+1}, 0xffff
    s_mov_b32 s{dsAF+2}, {4*147456}
    s_mov_b32 s{dsAF+3}, 0x20000
    s_lshl_b32 s{dOffA}, s{T+9}, 10
    s_add_u32 s{dOffA}, s{dOffA}, {32*1024}
    v_and_b32 v73, 31, v72
    v_lshrrev_b32 v74, 5, v72
    v_lshrrev_b32 v75, 4, v73
    s_mov_b32 s{T+11}, 147456
    v_mul_lo_u32 v75, v75, s{T+11}
    v_and_b32 v76, 15, v73
    v_lshl_add_u32 v76, v74, 4, v76
    v_lshl_add_u32 v{dAo}, v76, 4, v75
    v_add_u32 v{dAo+1}, {2*147456}, v{dAo}
    s_waitcnt lgkmcnt(0)
    s_lshl_b32 s{T+11}, s{sNT}, 7
    s_add_u32 s{dsB}, s{T+4}, s{T+11}
    s_addc_u32 s{dsB+1}, s{T+5}, 0
    s_and_b32 s{dsB+1}, s{dsB+1}, 0xffff
    s_sub_u32 s{dsB+2}, {3584*2048}, s{T+11}
    s_mov_b32 s{dsB+3}, 0x20000
    s_add_u32 s{dsWo}, s{T+12}, s{T+11}
    s_addc_u32 s{dsWo+1}, s{T+13}, 0
    s_and_b32 s{dsWo+1}, s{dsWo+1}, 0xffff
    s_mov_b32 s{dOffB}, 0
    s_lshl_b32 s{dM0}, s{sW}, 11
    s_mov_b32 s{dsX}, s{T+6}
    s_and_b32 s{dsX+1}, s{T+7}, 0xffff
    s_mov_b32 s{dsX+2}, 0x400000
    s_mov_b32 s{dsX+3}, 0x20000
    s_mov_b32 s{dsO}, s{T+14}
    s_and_b32 s{dsO+1}, s{T+15}, 0xffff
    s_mov_b32 s{dsO+2}, 0x400000
    s_mov_b32 s{dsO+3}, 0x20000
    """)
    sMH, sKH = T + 8, T + 9
    a(f"""
    v_lshrrev_b32 v75, 3, v72
    v_bfe_u32 v76, v72, 4, 1
    v_lshlrev_b32 v76, 2, v76
    v_and_b32 v77, 7, v72
    v_xor_b32 v76, v76, v77
    s_lshl_b32 s{T+11}, s{sW}, 4
    v_add_u32 v75, s{T+11}, v75
    v_lshlrev_b32 v75, 11, v75
    v_lshl_add_u32 v{dBg}, v76, 4, v75
    v_add_u32 v{dBg+1}, {8*2048}, v{dBg}
    v_bfe_u32 v75, v72, 2, 2
    v_lshl_add_u32 v75, v74, 3, v75
    s_lshl_b32 s{T+11}, s{sKH}, 5
    v_add_u32 v75, s{T+11}, v75
    v_lshlrev_b32 v75, 7, v75
    v_bfe_u32 v76, v72, 4, 1
    v_lshl_add_u32 v75, v76, 5, v75
    v_and_b32 v76, 3, v72
    v_lshl_add_u32 v75, v76, 3, v75
    v_bfe_u32 v76, v72, 3, 1
    v_lshl_add_u32 v{dWa}, v76, 6, v75
    v_xor_b32 v{dWa+1}, 64, v{dWa}
    """)
    vq = Q(a, "vmcnt")
    def b_dma(t):
        slot = t % 4
        L = []
        if t == NST1:
            L.append((f"s_mov_b32 s{dsB}, s{dsWo}\ns_mov_b32 s{dsB+1}, s{dsWo+1}\ns_lshl_b32 s{T+11}, s{sNT}, 7\ns_sub_u32 s{dsB+2}, {1024*2048}, s{T+11}\ns_mov_b32 s{dOffB}, 0", None))
        L += [(f"s_add_u32 m0, s{dM0}, {8192*slot}", None),
                (f"buffer_load_dwordx4 v{dBg}, {sr(dsB,4)}, s{dOffB} offen lds\ns_add_u32 m0, m0, 0x400", ("B", t)),
                (f"buffer_load_dwordx4 v{dBg+1}, {sr(dsB,4)}, s{dOffB} offen lds\ns_add_u32 s{dOffB}, s{dOffB}, {64*2048}", ("B", t))]
        return L
    def a_ld(t):
        slot = t % NAS
        L = []
        sc = " sc1" if t >= NST1 else ""
        for i in range(2):
            for s in range(2):
                x = f"buffer_load_dwordx4 {vr(dA+16*slot+(i*2+s)*4,4)}, v{dAo+i}, {sr(dsAF,4)}, s{dOffA} offen offset:{512*s}{sc}"
                if i == 1 and s == 1: x += f"\ns_add_u32 s{dOffA}, s{dOffA}, 2048"
                L.append((x, ("A", t)))
        return L
    def w_rd(t):
        slot = t % 4; fs = t & 1
        L = []
        for s in range(2):
            for j in range(2):
                b = dW[fs] + (j * 2 + s) * 4
                off = 8192 * slot + 16 * s * 128
                L.append((f"ds_read_b64_tr_b16 {vr(b,2)}, v{dWa+j} offset:{off}", None))
                L.append((f"ds_read_b64_tr_b16 {vr(b+2,2)}, v{dWa+j} offset:{off+512}", None))
        return L
    def emit(it):
        if it[1] is None: a(it[0])
        else: vq.issue(it[0], it[1])
    for t in range(3):
        for it in b_dma(t):
            emit(it); a("s_nop 0")
        for it in a_ld(t): emit(it)
    vq.wait({("B", 0)})
    a("s_barrier")
    for it in w_rd(0): emit(it)
    def step(t, rt, first=False):
        vq.wait({("A", t), ("B", t + 1)})
        a("s_waitcnt lgkmcnt(0)")
        if rt + 1 < NST: a("s_barrier")
        fills = []
        if rt + 1 < NST: fills += w_rd(t + 1)
        if rt + 3 < NST: fills += b_dma(t + 3)
        late = []
        if rt + 3 < NST:
            if rt + 3 == NST1: late = a_ld(t + 3)
            else: fills += a_ld(t + 3)
        m = []
        fs = t & 1; slot = t % NAS
        for s in range(2):
            for j in range(2):
                for i in range(2):
                    c = dAcc + (j * 2 + i) * 16
                    cc = "0" if (first and s == 0) else vr(c, 16)
                    m.append((f"v_mfma_f32_32x32x16_bf16 {vr(c,16)}, {vr(dW[fs]+(j*2+s)*4,4)}, {vr(dA+16*slot+(i*2+s)*4,4)}, {cc}", None))
        for it in interleave(m, fills, 0, 8): emit(it)
        if late:
            a(f"""
            s_lshl_b32 s{T+11}, s{sMT}, 8
            s_add_u32 s{T+11}, s{T+11}, {WS_CNT}
            v_mov_b32 v6, s{T+11}
            s_lshl_b32 s{dOffA}, s{sKH}, 10
            s_mov_b32 s{T+12}, 0x40000
            s_cmp_lg_u32 s{sW}, 0
            s_cbranch_scc1 L_dn_go
            """)
            a.label("L_dn_poll")
            a(f"""
            global_load_dword v7, v6, s[{T}:{T+1}] sc1
            s_waitcnt vmcnt(0)
            v_readfirstlane_b32 s{T+11}, v7
            s_cmp_ge_u32 s{T+11}, 32
            s_cbranch_scc1 L_dn_go
            s_sub_u32 s{T+12}, s{T+12}, 1
            s_cmp_eq_u32 s{T+12}, 0
            s_cbranch_scc1 L_dn_go
            s_sleep 8
            s_branch L_dn_poll
            """)
            a.label("L_dn_go")
            a("s_waitcnt vmcnt(0)\ns_barrier")
            vq.q = []
            for it in late: emit(it)
    for t in range(8): step(t, t, first=(t == 0))
    a(f"s_mov_b32 s{dCnt}, 3")
    a.label("L_dn_loop")
    q0 = list(vq.q)
    for t in range(8, 20): step(t, t)
    assert q0 == [(x, y - 12) for (x, y) in vq.q]
    a(f"""
    s_sub_u32 s{dCnt}, s{dCnt}, 1
    s_cmp_lg_u32 s{dCnt}, 0
    s_cbranch_scc1 L_dn_loop
    """)
    vq.q = [(x, y + 24) for (x, y) in vq.q]
    for t in range(44, NST): step(t, t)
    vx = 72
    a(f"""
    v_mbcnt_lo_u32_b32 v2, -1, 0
    v_mbcnt_hi_u32_b32 v2, -1, v2
    v_and_b32 v3, 31, v2
    v_lshrrev_b32 v4, 5, v2
    s_lshl_b32 s{T+11}, s{sMT}, 7
    s_lshl_b32 s{T+12}, s{sMH}, 6
    s_add_u32 s{T+11}, s{T+11}, s{T+12}
    v_add_u32 v6, s{T+11}, v3
    v_lshlrev_b32 v6, 11, v6
    s_lshl_b32 s{T+11}, s{sNT}, 7
    s_lshl_b32 s{T+12}, s{sKH}, 6
    s_add_u32 s{T+11}, s{T+11}, s{T+12}
    v_add_u32 v6, s{T+11}, v6
    v_lshl_add_u32 v7, v4, 4, v6
    v_lshl_add_u32 v6, v4, 3, v6
    s_mov_b32 s{T+11}, {32*2048}
    """)
    for i in range(2):
        for aa in range(4):
            so = "0" if i == 0 else f"s{T+11}"
            a(f"buffer_load_dwordx2 {vr(vx+(i*4+aa)*2,2)}, v6, {sr(dsX,4)}, {so} offen offset:{16*aa}")
    a(f"""
    s_barrier
    s_lshl_b32 s{T+12}, s{sW}, 13
    s_xor_b32 s{T+13}, s{T+12}, 16384
    v_lshlrev_b32 v5, 4, v2
    v_add_u32 v{dAo}, s{T+13}, v5
    v_add_u32 v5, s{T+12}, v5
    s_cmp_eq_u32 s{sKH}, 0
    s_cbranch_scc1 L_dn_k0
    """)
    vp = 104
    for kh in (1, 0):
        keep = dAcc + kh * 32
        send = dAcc + (1 - kh) * 32
        for q in range(8):
            a(f"ds_write_b128 v{dAo}, {vr(send+4*q,4)} offset:{1024*q}")
        a("s_waitcnt lgkmcnt(0)\ns_barrier")
        for q in range(8):
            a(f"ds_read_b128 {vr(vp+4*q,4)}, v5 offset:{1024*q}")
        a("s_waitcnt vmcnt(0) lgkmcnt(0)")
        for q in range(8):
            x0 = vx + 2 * q; c = keep + 4 * q; p = vp + 4 * q
            a(f"""
            v_add_f32 v{c}, v{c}, v{p}
            v_add_f32 v{c+1}, v{c+1}, v{p+1}
            v_add_f32 v{c+2}, v{c+2}, v{p+2}
            v_add_f32 v{c+3}, v{c+3}, v{p+3}
            v_lshlrev_b32 v{p}, 16, v{x0}
            v_and_b32 v{p+1}, 0xffff0000, v{x0}
            v_lshlrev_b32 v{p+2}, 16, v{x0+1}
            v_and_b32 v{p+3}, 0xffff0000, v{x0+1}
            v_add_f32 v{c}, v{c}, v{p}
            v_add_f32 v{c+1}, v{c+1}, v{p+1}
            v_add_f32 v{c+2}, v{c+2}, v{p+2}
            v_add_f32 v{c+3}, v{c+3}, v{p+3}
            v_cvt_pk_bf16_f32 v{136+2*q}, v{c}, v{c+1}
            v_cvt_pk_bf16_f32 v{137+2*q}, v{c+2}, v{c+3}
            """)
        a("s_nop 1")
        for i in range(2):
            for k in range(2):
                b = 136 + 8 * i + 4 * k
                a(f"v_permlane32_swap_b32 v{b}, v{b+2}")
                a(f"v_permlane32_swap_b32 v{b+1}, v{b+3}")
        for i in range(2):
            for k in range(2):
                b = 136 + 8 * i + 4 * k
                so = "0" if i == 0 else f"s{T+11}"
                a(f"buffer_store_dwordx4 {vr(b,4)}, v7, {sr(dsO,4)}, {so} offen offset:{32*k}")
        stamp_end(a, 3, 3, sW, f"dn{kh}", 72, 2)
        a("s_endpgm")
        if kh == 1: a.label("L_dn_k0")

def gen_mid(a, name="mid_kernel"):
    kernel_header(a, name)
    T = sT
    stamp0(a)
    a(f"""
    s_cmp_ge_u32 s2, {GRID}
    s_cbranch_scc1 L_mid_done
    s_load_dwordx2 s[{T}:{T+1}], s[0:1], {KA_WS}
    v_lshrrev_b32 v1, 6, v0
    v_and_b32 v2, 63, v0
    s_nop 0
    v_readfirstlane_b32 s{sW}, v1
    s_and_b32 s{T+4}, s2, 7
    s_lshr_b32 s{T+5}, s2, 3
    s_mov_b32 s{T+6}, 0x55555556
    s_mul_hi_u32 s{T+6}, s{T+5}, s{T+6}
    s_mul_i32 s{T+7}, s{T+6}, 3
    s_sub_u32 s{T+7}, s{T+5}, s{T+7}
    s_waitcnt lgkmcnt(0)
    s_cmp_eq_u32 s{T+7}, 2
    s_cbranch_scc1 L_mid_dn
    s_mov_b32 s28, s{T+7}
    s_lshl_b32 s{T+6}, s{T+6}, 1
    s_add_u32 s{T+6}, s{T+6}, s{T+7}
    s_lshl_b32 s{T+2}, s{T+4}, 2
    s_and_b32 s{T+7}, s{T+6}, 3
    s_add_u32 s{T+2}, s{T+2}, s{T+7}
    s_lshr_b32 s{T+3}, s{T+6}, 2
    """)
    if 'dnonly' in EXPT: a("s_endpgm")
    attn_role(a)
    a.label("L_mid_dn")
    if 'atonly' in EXPT: a("s_endpgm")
    a(f"""
    s_lshr_b32 s{T+2}, s{T+4}, 1
    s_lshl_b32 s{T+2}, s{T+2}, 2
    s_and_b32 s{T+7}, s{T+6}, 3
    s_add_u32 s{T+2}, s{T+2}, s{T+7}
    s_and_b32 s{T+3}, s{T+4}, 1
    s_lshl_b32 s{T+3}, s{T+3}, 3
    s_lshr_b32 s{T+7}, s{T+6}, 2
    s_add_u32 s{T+3}, s{T+3}, s{T+7}
    """)
    dn_role(a)
    a.label("L_mid_done")
    a("s_endpgm")
    return descriptor(name, NVGPR, 102)
```

```python
from common import *
import os
STAMPS = os.environ.get("STAMPS", "0") == "1"
def stamp0(a):
    if STAMPS:
        a("s_memtime s[96:97]\ns_memrealtime s[98:99]\ns_waitcnt lgkmcnt(0)\ns_mov_b32 s97, s98")
def stampv(a, v):
    if STAMPS:
        a(f"s_memtime s[98:99]\ns_waitcnt lgkmcnt(0)\nv_mov_b32 v{v}, s98")
def stamp_end(a, v1, v2, sW, tag, t, kidx):
    if STAMPS:
        a(f"""
        s_waitcnt vmcnt(0)
        s_memtime s[98:99]
        s_memrealtime s[100:101]
        s_waitcnt lgkmcnt(0)
        s_sub_u32 s98, s98, s96
        s_mov_b32 s99, s100
        s_load_dwordx2 s[100:101], s[0:1], {KA_WS}
        s_waitcnt lgkmcnt(0)
        s_cmp_lg_u32 s{sW}, 0
        s_cbranch_scc1 L_{tag}_nostamp
        v_subrev_u32 v{t}, s96, v{v1}
        v_subrev_u32 v{t+1}, s96, v{v2}
        v_mov_b32 v{t+2}, s98
        v_mov_b32 v{t+3}, s97
        v_mov_b32 v{t+4}, s99
        s_getreg_b32 s98, hwreg(HW_REG_XCC_ID)
        v_mov_b32 v{t+5}, s98
        s_getreg_b32 s98, hwreg(HW_REG_HW_ID)
        v_mov_b32 v{t+6}, s98
        v_mov_b32 v{t+7}, 0
        s_lshl_b32 s98, s2, 5
        s_add_u32 s98, s98, {(200<<20) + kidx*65536}
        v_mov_b32 v{t+8}, s98
        global_store_dwordx4 v{t+8}, v[{t}:{t+3}], s[100:101]
        global_store_dwordx4 v{t+8}, v[{t+4}:{t+7}], s[100:101] offset:16
        """)
        a.label(f"L_{tag}_nostamp")
```

```python
import sys
from common import *
from k_ln import gen_ln
from k_gemm1 import gen_gemm1, LDS_TOTAL as G1_LDS, BLOCK as G1_BLOCK

def build(which):
    a = Asm()
    hdr = []
    descs = []
    if "ln" in which:
        hdr.append("; @launch kernel=ln_kernel grid=(512,1,1) block=(256,1,1) lds=0")
        descs.append(gen_ln(a))
    if "g1" in which:
        hdr.append(f"; @launch kernel=gemm1_kernel grid=(256,1,1) block=({G1_BLOCK},1,1) lds={G1_LDS}")
        descs.append(gen_gemm1(a))
    if "at" in which:
        from k_attn import gen_attn, LDS_TOTAL as AT_LDS, GRID as AT_GRID, BLOCK as AT_BLOCK
        hdr.append(f"; @launch kernel=attn_kernel grid=({AT_GRID},1,1) block=({AT_BLOCK},1,1) lds={AT_LDS}")
        descs.append(gen_attn(a))
    if "mid" in which:
        from k_mid import gen_mid, LDS_TOTAL as M_LDS, GRID as M_GRID, BLOCK as M_BLOCK
        hdr.append(f"; @launch kernel=mid_kernel grid=({M_GRID},1,1) block=({M_BLOCK},1,1) lds={M_LDS}")
        descs.append(gen_mid(a))
    if "g2" in which:
        from k_gemm2 import gen_gemm2, LDS_TOTAL as G2_LDS, GRID as G2_GRID, BLOCK as G2_BLOCK
        hdr.append(f"; @launch kernel=gemm2_kernel grid=({G2_GRID},1,1) block=({G2_BLOCK},1,1) lds={G2_LDS}")
        descs.append(gen_gemm2(a))
    out = "; generated by gen/gen.py\n" + "\n".join(hdr) + "\n"
    out += '.amdgcn_target "amdgcn-amd-amdhsa--gfx950"\n.text\n' + a.text()
    out += '.section .rodata,"a"\n' + "".join(descs)
    return out

if __name__ == "__main__":
    which = sys.argv[1].split(",")
    open(sys.argv[2], "w").write(build(which))
```

```python
from common import *
from stamps import *
from k_ln import ln_compute
import os

NW = int(os.environ.get("G1_NW", "8"))
MT = 4 if NW == 8 else 8
PD = int(os.environ.get("G1_PD", "3"))
R = PD + 1
STAMPS = os.environ.get("STAMPS", "0") == "1"
ST = os.environ.get("G1_ST", "sc1")
FLN = os.environ.get("G1_FLN", "0") == "1"
ASC = " sc1" if FLN else ""
SNAKE = os.environ.get("G1_SNAKE", "0") == "1"
AGP = os.environ.get("G1_AGPR", "0") == "1"
LDS_A = [0, 32768]
LDS_B = [65536, 65536 + 40960]
LDS_TOTAL = 147456
BLOCK = NW * 64
NA = 32 // NW
NB = 40 // NW

vXa = 8
vWa = 10
vAg = 20
vBi = 28
vPF = 24
sPF = 32
PFD = int(os.environ.get('G1_PFD', '3'))
vXF = [32, 32 + 4 * MT]
vWF = 32 + 8 * MT
vEnd = vWF + 4 * R
if NW == 8:
    ACCV = 96
    assert vEnd <= ACCV
    NVGPR, ACCUM = 256, (96 if AGP else 256)
else:
    ACCV = 192
    assert vEnd <= ACCV
    NVGPR, ACCUM = 512, 256

def acc(j, i):
    idx = j * MT + i
    if NW == 8:
        if AGP: return f"a[{4*idx}:{4*idx+3}]"
        return f"v[{ACCV+4*idx}:{ACCV+4*idx+3}]"
    if idx < 64:
        return f"a[{4*idx}:{4*idx+3}]"
    return f"v[{ACCV+4*(idx-64)}:{ACCV+4*(idx-64)+3}]"

sA = 8
sB = 12
sOffA = 52
sCnt = 53
sW = 54
sM0A = 56
sM0B = 58
sFlag = 60
sDst = 65
sWs = 4
sT = 70

def w_read(stage, s, j, slot):
    off = (LDS_B[stage] - LDS_B[0]) + (32 * s) * 64
    b = vWF + 4 * slot
    return [f"ds_read_b64_tr_b16 {vr(b,2)}, v{vWa+j} offset:{off}",
            f"ds_read_b64_tr_b16 {vr(b+2,2)}, v{vWa+j} offset:{off+256}"]

def x_read(stage, s, i):
    return f"ds_read_b128 {vr(vXF[s]+4*i,4)}, v{vXa+s} offset:{LDS_A[stage]+2048*i}"

def dma(stage, pf=True):
    L = [f"s_mov_b32 m0, s{sM0A+stage}"]
    for j in range(NA):
        L.append(f"buffer_load_dwordx4 v{vAg+j}, {sr(sA,4)}, s{sOffA} offen{ASC} lds\n" +
                 ("s_add_u32 m0, m0, 0x400" if j < NA - 1 else f"s_mov_b32 m0, s{sM0B+stage}"))
    for i in range(NB):
        L.append(f"buffer_load_dwordx4 {vr(vBi,2)}, {sr(sB+4*i,4)}, 0 idxen offen lds\n" +
                 "s_add_u32 m0, m0, 0x1000")
    L.append(f"s_add_u32 s{sOffA}, s{sOffA}, 128\nv_add_u32 v{vBi}, 64, v{vBi}")
    if PFD and pf:
        L.append(f"buffer_load_dword v26, {vr(vPF,2)}, {sr(sPF,4)}, 0 idxen offen\nv_add_u32 v{vPF}, 64, v{vPF}")
    return L

class Sched:
    def __init__(self, a):
        self.a = a
        self.q = []
    def issue(self, instr, tag):
        self.a(instr); self.q.append(tag)
    def wait(self, tags):
        last = -1
        for i, t in enumerate(self.q):
            if t in tags: last = i
        if last >= 0:
            n = len(self.q) - 1 - last
            assert n <= 15
            self.a(f"s_waitcnt lgkmcnt({n})")
            self.q = self.q[last + 1:]
    def drain(self):
        self.a("s_waitcnt lgkmcnt(0)"); self.q = []

def group(sc, t, s, j, fills, first=False):
    a = sc.a
    n = (t * 20 + s * 10 + j)
    slot = n % R
    sc.wait({("W", n), ("X", t, s)})
    m = []
    order = list(range(MT))
    if SNAKE and (j & 1): order = order[::-1]
    for i in order:
        c = "0" if first else acc(j, i)
        m.append(f"v_mfma_f32_16x16x32_bf16 {acc(j,i)}, {vr(vWF+4*slot,4)}, {vr(vXF[s]+4*i,4)}, {c}")
    seq = interleave([(x, "M") for x in m], fills, 0, MT)
    for ins, tag in seq:
        if tag == "M" or tag is None:
            a(ins)
        else:
            sc.issue(ins, tag)

def wfill(n):
    t, r = divmod(n, 20)
    s, j = divmod(r, 10)
    return [(x, ("W", n)) for x in w_read(t & 1, s, j, n % R)]

def phase(a, t, lead=True, do_dma=True, tail=True, first=False):
    sc = Sched(a)
    order = []
    if lead:
        order += [(t, 1, j) for j in range(10 - PD, 10)]
    if tail:
        order += [(t + 1, 0, j) for j in range(10)] + [(t + 1, 1, j) for j in range(10 - PD)]
    fills = {g: [] for g in order}
    tn = t + 1
    if tail:
        xr = [(x_read(tn & 1, 0, i), ("X", tn, 0)) for i in range(MT)]
        if lead:
            for k, g in enumerate(order[:PD]):
                fills[g] += wfill(tn * 20 + k)
                lo = (MT * k) // PD; hi = (MT * (k + 1)) // PD
                fills[g] += xr[lo:hi]
        else:
            for ins, tag in xr: sc.issue(ins, tag)
            for k in range(PD):
                for ins, tag in wfill(tn * 20 + k): sc.issue(ins, tag)
        for (tt, s, j) in order:
            if tt == tn:
                n = tn * 20 + s * 10 + j
                if s * 10 + j + PD < 20:
                    fills[(tt, s, j)] += wfill(n + PD)
        xr1 = [(x_read(tn & 1, 1, i), ("X", tn, 1)) for i in range(MT)]
        for i in range(MT):
            fills[(tn, 0, 1 + (i * 8) // MT)].append(xr1[i])
    if do_dma:
        d = dma(t & 1)
        ng = min(len(order), 10)
        for k, x in enumerate(d):
            fills[order[(k * ng) // len(d)]].append((x, None))
    for g in order:
        group(sc, g[0], g[1], g[2], fills[g], first=(first and g[1] == 0))
    return sc

def barrier(a, pf=True):
    a(f"s_waitcnt vmcnt({1 if (pf and PFD) else 0}) lgkmcnt(0)")
    a("s_barrier")

def gen_gemm1(a, name="gemm1_kernel"):
    kernel_header(a, name)
    T = sT
    stamp0(a)
    a(f"""
    s_cmp_ge_u32 s2, 256
    s_cbranch_scc1 L_g1_done
    s_load_dwordx2 s[{T}:{T+1}], s[0:1], {KA_WQKV}
    s_load_dwordx2 s[{T+2}:{T+3}], s[0:1], {KA_WG}
    s_load_dwordx2 s[{T+4}:{T+5}], s[0:1], {KA_WU}
    s_load_dwordx2 s[{T+6}:{T+7}], s[0:1], {KA_WS}
    s_load_dwordx2 s[36:37], s[0:1], {KA_X}
    s_load_dwordx2 s[40:41], s[0:1], {KA_DBG}
    v_lshrrev_b32 v1, 6, v0
    v_and_b32 v2, 63, v0
    s_nop 0
    v_readfirstlane_b32 s{sW}, v1
    s_and_b32 s{T+8}, s2, 7
    s_lshr_b32 s{T+9}, s2, 3
    s_and_b32 s{T+10}, s{T+9}, 7
    s_lshr_b32 s{T+9}, s{T+9}, 3
    s_lshl_b32 s{T+8}, s{T+8}, 2
    s_add_u32 s{T+9}, s{T+9}, s{T+8}
    """)
    sRT, sCT = T + 10, T + 9
    sNGU, sUB, sCB = T + 11, T + 12, T + 13
    a(f"""
    s_cmp_eq_u32 s{sCT}, 9
    s_cselect_b32 s{sNGU}, 2, 5
    s_cselect_b32 s{sUB}, 6, 0
    s_mul_i32 s{sCB}, s{sCT}, 160
    s_sub_u32 s{sCB}, s{sCB}, {1600-64}
    s_cmp_eq_u32 s{sCT}, 9
    s_cselect_b32 s{sCB}, 0, s{sCB}
    s_waitcnt lgkmcnt(0)
    s_mov_b32 s{sWs}, s{T+6}
    s_and_b32 s{sWs+1}, s{T+7}, 0xffff
    s_mov_b32 s{sWs+2}, {WS_BYTES}
    s_mov_b32 s{sWs+3}, 0x20000
    s_lshl_b32 s{T+14}, s{sRT}, 19
    s_add_u32 s{sA}, s{T+6}, s{T+14}
    s_addc_u32 s{sA+1}, s{T+7}, 0
    s_and_b32 s{sA+1}, s{sA+1}, 0xffff
    s_sub_u32 s{sA+2}, 0x400000, s{T+14}
    s_mov_b32 s{sA+3}, 0x20000
    s_mov_b32 s{sOffA}, 0
    """)
    LO = 100
    if FLN:
        a(f"""
        s_and_b32 s37, s37, 0xffff
        s_mov_b32 s38, 0x400000
        s_mov_b32 s39, 0x20000
        s_lshl_b32 s{T+14}, s2, 3
        s_add_u32 s{T+14}, s{T+14}, s{sW}
        s_lshl_b32 s{T+14}, s{T+14}, 11
        v_lshlrev_b32 v{LO+1}, 4, v2
        v_add_u32 v{LO+1}, s{T+14}, v{LO+1}
        buffer_load_dwordx4 v[{LO+4}:{LO+7}], v{LO+1}, s[36:39], 0 offen
        buffer_load_dwordx4 v[{LO+8}:{LO+11}], v{LO+1}, s[36:39], 0 offen offset:1024
        """)
    a(f"""
    v_lshrrev_b32 v3, 3, v2
    v_lshrrev_b32 v4, 4, v2
    v_and_b32 v5, 7, v2
    s_mul_i32 s{T+14}, s{sW}, {8*NA}
    """)
    for j in range(NA):
        a(f"""
        v_add_u32 v6, {4*j}, v4
        v_and_b32 v6, 7, v6
        v_xor_b32 v6, v6, v5
        v_add_u32 v7, {8*j}, v3
        v_add_u32 v7, s{T+14}, v7
        v_lshlrev_b32 v7, 11, v7
        v_lshl_add_u32 v{vAg+j}, v6, 4, v7
        """)
    sKQ, sU0 = T + 14, T + 15
    a(f"""
    s_and_b32 s{sKQ}, s{sW}, 3
    s_lshr_b32 s{sU0}, s{sW}, 2
    s_mul_i32 s{sU0}, s{sU0}, 5
    s_lshl_b32 s{T+16}, s{sKQ}, 4
    v_lshrrev_b32 v3, 2, v2
    v_add_u32 v{vBi}, s{T+16}, v3
    v_and_b32 v4, 3, v2
    v_lshrrev_b32 v5, 5, v2
    v_lshlrev_b32 v5, 1, v5
    v_xor_b32 v4, v4, v5
    v_lshlrev_b32 v{vBi+1}, 4, v4
    s_mul_i32 s{T+16}, s{sCT}, 10
    """)
    def build_srd(b, uexpr):
        u, gu, ur, col, strd = [T + 17 + x for x in range(5)]
        a(uexpr.replace("DST", f"s{u}"))
        a(f"""
        s_add_u32 s{gu}, s{T+16}, s{u}
        s_sub_u32 s{ur}, s{u}, s{sUB}
        s_sub_u32 s{col}, s{ur}, s{sNGU}
        s_cmp_ge_u32 s{ur}, s{sNGU}
        s_cselect_b32 s{ur}, s{col}, s{ur}
        s_cselect_b32 s{b}, s{T+4}, s{T+2}
        s_cselect_b32 s{b+1}, s{T+5}, s{T+3}
        s_lshl_b32 s{col}, s{ur}, 5
        s_add_u32 s{col}, s{col}, s{sCB}
        s_lshl_b32 s{col}, s{col}, 1
        s_lshl_b32 s{ur}, s{gu}, 6
        s_cmp_lt_u32 s{gu}, 96
        s_cselect_b32 s{col}, s{ur}, s{col}
        s_cselect_b32 s{b}, s{T}, s{b}
        s_cselect_b32 s{b+1}, s{T+1}, s{b+1}
        s_cselect_b32 s{strd}, 6, 7
        s_lshl_b32 s{strd}, s{strd}, 26
        s_add_u32 s{b}, s{b}, s{col}
        s_addc_u32 s{b+1}, s{b+1}, 0
        s_and_b32 s{b+1}, s{b+1}, 0xffff
        s_or_b32 s{b+1}, s{b+1}, s{strd}
        s_mov_b32 s{b+2}, 1024
        s_mov_b32 s{b+3}, 0x20000
        """)
    for i in range(NB):
        build_srd(sB + 4 * i, f"s_add_u32 DST, s{sU0}, {i}")
    a(f"""
    s_mul_i32 s{sM0A}, s{sW}, {NA*1024}
    s_add_u32 s{sM0A+1}, s{sM0A}, {LDS_A[1]}
    s_lshl_b32 s{sM0B}, s{sU0}, 12
    s_lshl_b32 s{T+16}, s{sKQ}, 10
    s_add_u32 s{sM0B}, s{sM0B}, s{T+16}
    s_add_u32 s{sM0B+1}, s{sM0B}, {LDS_B[1]}
    s_add_u32 s{sM0B}, s{sM0B}, {LDS_B[0]}
    """)
    def dmaA(st):
        a(f"s_mov_b32 m0, s{sM0A+st}\ns_nop 0")
        for j in range(NA):
            a(f"buffer_load_dwordx4 v{vAg+j}, {sr(sA,4)}, s{sOffA} offen{ASC} lds\ns_add_u32 m0, m0, 0x400\ns_nop 0")
        a(f"s_add_u32 s{sOffA}, s{sOffA}, 128")
    def dmaB(st):
        a(f"s_mov_b32 m0, s{sM0B+st}\ns_nop 0")
        for i in range(NB):
            a(f"buffer_load_dwordx4 {vr(vBi,2)}, {sr(sB+4*i,4)}, 0 idxen offen lds\ns_add_u32 m0, m0, 0x1000\ns_nop 0")
        a(f"v_add_u32 v{vBi}, 64, v{vBi}")
    if FLN:
        dmaB(0); dmaB(1)
    else:
        dmaA(0); dmaB(0); dmaA(1); dmaB(1)
    if PFD:
        a(f"""
        s_mul_i32 s{T+16}, s{sCT}, 10
        s_lshl_b32 s{T+14}, s{sW}, 3
        s_add_u32 s{T+14}, s{T+14}, s{sRT}
        """)
        build_srd(sPF, f"s_min_u32 DST, s{T+14}, 9")
        a(f"""
        s_cmp_lt_u32 s{T+14}, 10
        s_cselect_b32 s{sPF+2}, 1024, 0
        v_add_u32 v{vPF}, 128, v2
        v_mov_b32 v{vPF+1}, 0
        """)
        for k in range(PFD - 2):
            a(f"buffer_load_dword v26, {vr(vPF,2)}, {sr(sPF,4)}, 0 idxen offen\nv_add_u32 v{vPF}, 64, v{vPF}")
    if FLN:
        npf = (PFD - 2) if PFD else 0
        a(f"s_waitcnt vmcnt({2*NB + npf})")
        ln_compute(a, LO, T + 17)
        a(f"""
        buffer_store_dwordx4 v[{LO+4}:{LO+7}], v{LO+1}, {sr(sWs,4)}, 0 offen sc1
        buffer_store_dwordx4 v[{LO+8}:{LO+11}], v{LO+1}, {sr(sWs,4)}, 0 offen offset:1024 sc1
        """)
    sWM, sWN = T + 14, T + 15
    WMN = NW // 2
    a(f"""
    s_and_b32 s{sWM}, s{sW}, {WMN-1}
    s_lshr_b32 s{sWN}, s{sW}, {1 if WMN == 2 else 2}
    v_and_b32 v3, 15, v2
    v_lshrrev_b32 v4, 4, v2
    v_lshrrev_b32 v5, 1, v3
    s_mul_i32 s{T+16}, s{sWM}, {16*MT}
    v_add_u32 v6, s{T+16}, v3
    v_lshlrev_b32 v6, 7, v6
    """)
    for s in range(2):
        a(f"""
        v_add_u32 v7, {4*s}, v4
        v_xor_b32 v7, v7, v5
        v_lshl_add_u32 v{vXa+s}, v7, 4, v6
        """)
    a(f"""
    v_lshrrev_b32 v5, 2, v2
    v_and_b32 v5, 3, v5
    v_lshl_add_u32 v5, v4, 3, v5
    v_lshlrev_b32 v5, 6, v5
    v_and_b32 v6, 3, v2
    v_lshl_add_u32 v5, v6, 3, v5
    v_add_u32 v5, {LDS_B[0]}, v5
    v_and_b32 v6, 1, v4
    v_lshlrev_b32 v6, 5, v6
    s_mul_i32 s{T+16}, s{sCT}, 10
    s_mul_i32 s{T+17}, s{sWN}, 5
    """)
    for j in range(5):
        t, gu, tp, lo, hi, h, x = [T + 18 + k for k in range(7)]
        a(f"""
        s_add_u32 s{t}, s{T+17}, {j}
        s_add_u32 s{gu}, s{T+16}, s{t}
        s_sub_u32 s{tp}, s{t}, s{sUB}
        s_and_b32 s{h}, s{tp}, 1
        s_lshr_b32 s{x}, s{tp}, 1
        s_add_u32 s{x}, s{x}, s{sUB}
        s_lshl_b32 s{lo}, s{x}, 12
        s_add_u32 s{x}, s{x}, s{sNGU}
        s_lshl_b32 s{hi}, s{x}, 12
        s_lshl_b32 s{x}, s{h}, 5
        s_add_u32 s{lo}, s{lo}, s{x}
        s_add_u32 s{hi}, s{hi}, s{x}
        s_lshl_b32 s{x}, s{tp}, 4
        s_add_u32 s{x}, s{x}, s{sCB}
        s_lshr_b32 s{sDst+j}, s{x}, 5
        s_lshl_b32 s{sDst+j}, s{sDst+j}, 10
        s_and_b32 s{x}, s{x}, 16
        s_lshl_b32 s{x}, s{x}, 5
        s_add_u32 s{sDst+j}, s{sDst+j}, s{x}
        s_add_u32 s{sDst+j}, s{sDst+j}, {WS_AF + 32*1024}
        s_lshl_b32 s{x}, s{gu}, 17
        s_add_u32 s{x}, s{x}, {WS_QKV}
        s_lshl_b32 s{t}, s{t}, 12
        s_add_u32 s{h}, s{t}, 32
        s_cmp_lt_u32 s{gu}, 32
        s_cselect_b32 s{sFlag+j}, 2, 1
        s_cmp_lt_u32 s{gu}, 96
        s_cselect_b32 s{sFlag+j}, s{sFlag+j}, 0
        s_cselect_b32 s{sDst+j}, s{x}, s{sDst+j}
        s_cselect_b32 s{lo}, s{t}, s{lo}
        s_cselect_b32 s{hi}, s{h}, s{hi}
        v_xor_b32 v7, s{lo}, v6
        v_add_u32 v{vWa+2*j}, v7, v5
        v_xor_b32 v7, s{hi}, v6
        v_add_u32 v{vWa+2*j+1}, v7, v5
        """)
    if FLN:
        a(f"""
        s_waitcnt vmcnt(0)
        s_barrier
        s_cmp_lg_u32 s{sW}, 0
        s_cbranch_scc1 L_g1_flagok
        v_mov_b32 v{LO}, s2
        v_mov_b32 v{LO+1}, 1
        s_mov_b64 exec, 1
        global_store_byte v{LO}, v{LO+1}, s[40:41] sc1
        s_mov_b64 exec, -1
        s_cmp_lg_u32 s2, 0
        s_cbranch_scc1 L_g1_nozero
        v_lshlrev_b32 v{LO}, 5, v2
        v_add_u32 v{LO}, {WS_CNT}, v{LO}
        v_mov_b32 v{LO+4}, 0
        v_mov_b32 v{LO+5}, 0
        v_mov_b32 v{LO+6}, 0
        v_mov_b32 v{LO+7}, 0
        buffer_store_dwordx4 v[{LO+4}:{LO+7}], v{LO}, {sr(sWs,4)}, 0 offen
        buffer_store_dwordx4 v[{LO+4}:{LO+7}], v{LO}, {sr(sWs,4)}, 0 offen offset:16
        """)
        a.label("L_g1_nozero")
        a(f"""
        v_and_b32 v{LO}, 7, v2
        v_lshlrev_b32 v{LO}, 2, v{LO}
        s_lshl_b32 s{T+16}, s{sRT}, 5
        v_add_u32 v{LO}, s{T+16}, v{LO}
        s_mov_b32 s{T+16}, 0x40000
        s_mov_b32 s{T+17}, 0x01010101
        """)
        a.label("L_g1_poll")
        a(f"""
        global_load_dword v{LO+1}, v{LO}, s[40:41] sc1
        s_waitcnt vmcnt(0)
        v_cmp_ne_u32 vcc, s{T+17}, v{LO+1}
        s_cbranch_vccz L_g1_flagok
        s_sub_u32 s{T+16}, s{T+16}, 1
        s_cmp_eq_u32 s{T+16}, 0
        s_cbranch_scc1 L_g1_flagok
        s_sleep 4
        s_branch L_g1_poll
        """)
        a.label("L_g1_flagok")
        a("s_barrier")
        dmaA(0); dmaA(1)
        a(f"s_waitcnt vmcnt({NA})")
        a("s_barrier")
    else:
        a(f"s_waitcnt vmcnt({NA+NB+(PFD-2 if PFD else 0)})")
        a("s_barrier")
    stampv(a, 30)
    phase(a, -1, lead=False, do_dma=False, first=True)
    a(f"s_waitcnt vmcnt({0 if FLN else (PFD-2 if PFD else 0)}) lgkmcnt(0)\ns_barrier")
    a(f"s_mov_b32 s{sCnt}, 7")
    a.label("L_g1_loop")
    phase(a, 0)
    barrier(a)
    phase(a, 1)
    barrier(a)
    a(f"""
    s_sub_u32 s{sCnt}, s{sCnt}, 1
    s_cmp_lg_u32 s{sCnt}, 0
    s_cbranch_scc1 L_g1_loop
    """)
    phase(a, 14, do_dma=False)
    a("s_waitcnt lgkmcnt(0)")
    phase(a, 15, do_dma=False, tail=False)
    stampv(a, 31)
    a(f"""
    s_lshl_b32 s{T+16}, s{sRT}, 8
    s_mul_i32 s{T+17}, s{sWM}, {16*MT}
    s_add_u32 s{T+16}, s{T+16}, s{T+17}
    v_add_u32 v5, s{T+16}, v3
    v_lshlrev_b32 v6, 6, v5
    v_lshl_add_u32 v6, v4, 4, v6
    v_lshrrev_b32 v7, 1, v4
    s_lshr_b32 s{T+16}, s{T+16}, 4
    v_add_u32 v7, s{T+16}, v7
    s_mov_b32 s{T+17}, {144*1024}
    v_mul_lo_u32 v7, v7, s{T+17}
    v_and_b32 v5, 1, v4
    v_lshl_add_u32 v5, v5, 4, v3
    v_lshl_add_u32 v7, v5, 4, v7
    s_mov_b32 s{T+18}, 0xbfb8aa3b
    s_nop 7
    """)
    tmpA = 32
    def accregs(j, i, tmp):
        s = acc(j, i)
        lo = int(s[2:s.index(":")])
        if s[0] == "v":
            return lo
        for r in range(4):
            a(f"v_accvgpr_read_b32 v{tmp+r}, a{lo+r}")
        return tmp
    for j in range(5):
        a(f"""
        s_cmp_eq_u32 s{sFlag+j}, 0
        s_cbranch_scc1 L_g1_eg{j}
        s_cmp_eq_u32 s{sFlag+j}, 2
        s_cselect_b32 s{T+19}, 0x3e8293ee, 1.0
        """)
        for i in range(MT):
            p = 64 + 4 * (i & 3)
            c0 = accregs(2 * j, i, 32)
            c1 = accregs(2 * j + 1, i, 36)
            for r in range(4):
                a(f"v_mul_f32 v{c0+r}, s{T+19}, v{c0+r}")
                a(f"v_mul_f32 v{c1+r}, s{T+19}, v{c1+r}")
            a(f"""
            v_cvt_pk_bf16_f32 v{p}, v{c0}, v{c0+1}
            v_cvt_pk_bf16_f32 v{p+1}, v{c0+2}, v{c0+3}
            v_cvt_pk_bf16_f32 v{p+2}, v{c1}, v{c1+1}
            v_cvt_pk_bf16_f32 v{p+3}, v{c1+2}, v{c1+3}
            s_nop 1
            v_permlane32_swap_b32 v{p}, v{p+2}
            v_permlane32_swap_b32 v{p+1}, v{p+3}
            s_nop 1
            v_permlane16_swap_b32 v{p}, v{p+2}
            v_permlane16_swap_b32 v{p+1}, v{p+3}
            """)
            off = 1024 * i
            if off >= 4096:
                if off % 4096 == 0:
                    a(f"s_add_u32 s{sDst+j}, s{sDst+j}, 4096")
                off %= 4096
            a(f"buffer_store_dwordx4 {vr(p,4)}, v6, {sr(sWs,4)}, s{sDst+j} offen offset:{off} {ST}")
        a(f"s_branch L_g1_en{j}")
        a.label(f"L_g1_eg{j}")
        for i2 in range(MT // 2):
            p = 64 + 4 * (i2 & 3)
            t = 48
            regs = []
            for k in range(2):
                g = accregs(2 * j, 2 * i2 + k, 32 + 8 * k)
                u = accregs(2 * j + 1, 2 * i2 + k, 36 + 8 * k)
                regs += [(g + r, u + r) for r in range(4)]
            for r in range(8): a(f"v_mul_f32 v{t+r}, s{T+18}, v{regs[r][0]}")
            for r in range(8): a(f"v_exp_f32 v{t+r}, v{t+r}")
            for r in range(8): a(f"v_add_f32 v{t+r}, 1.0, v{t+r}")
            for r in range(8): a(f"v_rcp_f32 v{t+r}, v{t+r}")
            for r in range(8): a(f"v_mul_f32 v{t+8+r}, v{regs[r][0]}, v{regs[r][1]}")
            for r in range(8): a(f"v_mul_f32 v{t+r}, v{t+r}, v{t+8+r}")
            for r in range(4): a(f"v_cvt_pk_bf16_f32 v{p+r}, v{t+2*r}, v{t+2*r+1}")
            a(f"""
            s_nop 1
            v_permlane32_swap_b32 v{p}, v{p+2}
            v_permlane32_swap_b32 v{p+1}, v{p+3}
            s_nop 1
            v_permlane16_swap_b32 v{p}, v{p+2}
            v_permlane16_swap_b32 v{p+1}, v{p+3}
            """)
            if i2 > 0:
                a(f"s_add_u32 s{sDst+j}, s{sDst+j}, {2*144*1024}")
            a(f"buffer_store_dwordx4 {vr(p,4)}, v7, {sr(sWs,4)}, s{sDst+j} offen {ST}")
        a.label(f"L_g1_en{j}")
        a("s_nop 1")
    stamp_end(a, 30, 31, sW, "g1", 32, 1)
    a.label("L_g1_done")
    a("s_endpgm")
    return descriptor(name, NVGPR, 102, ACCUM)
```

```python
from common import *
import os
PFR = int(os.environ.get('LN_PFR', '0'))
from stamps import *

def wave_reduce_add(a, v, tmp_s):
    a(f"""
    s_nop 1
    v_add_f32_dpp v{v}, v{v}, v{v} quad_perm:[1,0,3,2] row_mask:0xf bank_mask:0xf
    s_nop 1
    v_add_f32_dpp v{v}, v{v}, v{v} quad_perm:[2,3,0,1] row_mask:0xf bank_mask:0xf
    s_nop 1
    v_add_f32_dpp v{v}, v{v}, v{v} row_half_mirror row_mask:0xf bank_mask:0xf
    s_nop 1
    v_add_f32_dpp v{v}, v{v}, v{v} row_mirror row_mask:0xf bank_mask:0xf
    s_nop 1
    v_readlane_b32 s{tmp_s}, v{v}, 0
    v_readlane_b32 s{tmp_s+1}, v{v}, 16
    v_readlane_b32 s{tmp_s+2}, v{v}, 32
    v_readlane_b32 s{tmp_s+3}, v{v}, 48
    s_nop 1
    v_mov_b32 v{v}, s{tmp_s}
    v_add_f32 v{v}, s{tmp_s+1}, v{v}
    v_add_f32 v{v}, s{tmp_s+2}, v{v}
    v_add_f32 v{v}, s{tmp_s+3}, v{v}
    """)

def rnd_bf16(a, v):
    a(f"""
    v_cvt_pk_bf16_f32 v{v}, v{v}, v{v}
    v_lshlrev_b32 v{v}, 16, v{v}
    """)

def ln_compute(a0, O, tmp_s):
    import re as _re
    def a(txt):
        a0(_re.sub(r'\bv(\d+)\b', lambda m: 'v' + str(int(m.group(1)) + O), txt))
    for i in range(8):
        a(f"v_lshlrev_b32 v{16+2*i}, 16, v{4+i}")
        a(f"v_and_b32 v{17+2*i}, 0xffff0000, v{4+i}")
    a("v_add_f32 v32, v16, v17")
    for i in range(2, 16):
        a(f"v_add_f32 v32, v32, v{16+i}")
    wave_reduce_add(a, 32, tmp_s)
    a("v_mul_f32 v32, 0x3a800000, v32")
    a("v_sub_f32 v34, v16, v32")
    a("v_mul_f32 v33, v34, v34")
    for i in range(1, 16):
        a(f"v_sub_f32 v34, v{16+i}, v32")
        a(f"v_fmac_f32 v33, v34, v34")
    wave_reduce_add(a, 33, tmp_s)
    a("v_mul_f32 v33, 0x3a800000, v33")
    rnd_bf16(a, 32)
    rnd_bf16(a, 33)
    a("v_add_f32 v33, 0x3727c5ac, v33")
    rnd_bf16(a, 33)
    a("v_sqrt_f32 v33, v33")
    a("s_nop 0")
    rnd_bf16(a, 33)
    a("v_rcp_f32 v35, v33")
    a("s_nop 0")
    a("v_fma_f32 v36, -v33, v35, 1.0")
    a("v_fma_f32 v35, v36, v35, v35")
    for i in range(16):
        a(f"v_sub_f32 v{16+i}, v{16+i}, v32")
    for i in range(8):
        a(f"v_cvt_pk_bf16_f32 v{4+i}, v{16+2*i}, v{17+2*i}")
    for i in range(8):
        a(f"v_lshlrev_b32 v{16+2*i}, 16, v{4+i}")
        a(f"v_and_b32 v{17+2*i}, 0xffff0000, v{4+i}")
    for i in range(16):
        a(f"v_mul_f32 v{16+i}, v{16+i}, v35")
    for i in range(8):
        a(f"v_cvt_pk_bf16_f32 v{4+i}, v{16+2*i}, v{17+2*i}")

def gen_ln(a, name="ln_kernel"):
    kernel_header(a, name)
    stamp0(a)
    a(f"""
    s_cmp_ge_u32 s2, 512
    s_cbranch_scc1 L_ln_done
    s_load_dwordx2 s[4:5], s[0:1], {KA_X}
    s_load_dwordx2 s[6:7], s[0:1], {KA_WS}
    s_load_dwordx2 s[22:23], s[0:1], {KA_WQKV}
    s_load_dwordx2 s[24:25], s[0:1], {KA_WG}
    s_load_dwordx2 s[26:27], s[0:1], {KA_WU}
    v_lshrrev_b32 v1, 6, v0
    v_and_b32 v2, 63, v0
    s_lshl_b32 s3, s2, 2
    v_add_u32 v1, s3, v1
    v_lshlrev_b32 v1, 11, v1
    v_lshl_add_u32 v1, v2, 4, v1
    s_waitcnt lgkmcnt(0)
    s_mov_b32 s8, s4
    s_and_b32 s9, s5, 0xffff
    s_mov_b32 s10, 0x400000
    s_mov_b32 s11, 0x20000
    s_add_u32 s12, s6, {WS_XN}
    s_addc_u32 s13, s7, 0
    s_and_b32 s13, s13, 0xffff
    s_mov_b32 s14, 0x400000
    s_mov_b32 s15, 0x20000
    buffer_load_dwordx4 v[4:7], v1, s[8:11], 0 offen
    buffer_load_dwordx4 v[8:11], v1, s[8:11], 0 offen offset:1024
    """)
    if PFR:
        a(f"""
        s_cmp_ge_u32 s2, {PFR}
        s_cbranch_scc1 L_ln_nopf
        v_lshrrev_b32 v3, 6, v0
        s_nop 0
        v_readfirstlane_b32 s16, v3
        s_cmp_eq_u32 s16, 3
        s_cbranch_scc1 L_ln_nopf
        s_cmp_eq_u32 s16, 1
        s_cselect_b32 s20, s24, s26
        s_cselect_b32 s21, s25, s27
        s_cmp_eq_u32 s16, 0
        s_cselect_b32 s20, s22, s20
        s_cselect_b32 s21, s23, s21
        s_cselect_b32 s17, 6, 7
        s_and_b32 s21, s21, 0xffff
        s_lshl_b32 s22, s17, 20
        s_mov_b32 s23, 0x20000
        s_lshl_b32 s17, s17, 10
        s_mul_i32 s17, s17, s2
        v_lshlrev_b32 v3, 7, v2
        buffer_load_dword v12, v3, s[20:23], s17 offen
        s_waitcnt vmcnt(1)
        s_branch L_ln_go
        """)
        a.label("L_ln_nopf")
        a("s_waitcnt vmcnt(0)")
        a.label("L_ln_go")
    else:
        a("s_waitcnt vmcnt(0)")
    ln_compute(a, 0, 16)
    a("""
    buffer_store_dwordx4 v[4:7], v1, s[12:15], 0 offen
    buffer_store_dwordx4 v[8:11], v1, s[12:15], 0 offen offset:1024
    """)
    if STAMPS:
        a("v_lshrrev_b32 v3, 6, v0\ns_nop 0\nv_readfirstlane_b32 s30, v3")
    stamp_end(a, 3, 3, 30, "ln", 16, 0)
    a(f"""
    s_cmp_lg_u32 s2, 0
    s_cbranch_scc1 L_ln_done
    v_lshlrev_b32 v1, 3, v0
    v_add_u32 v1, {WS_CNT}, v1
    v_mov_b32 v2, 0
    v_mov_b32 v3, 0
    global_store_dwordx2 v1, v[2:3], s[6:7]
    """)
    a.label("L_ln_done")
    a("s_endpgm")
    return descriptor(name, 40, 102)
```

```python
from common import *
from stamps import *
import os
GRID = 768
BLOCK = 256
LDS_TOTAL = 49152
NVGPR = 168
EXPT = os.environ.get('AT_EXPT', '')
THR = 0x47800000
WS_D = 64 << 20

class Q:
    def __init__(self, a, cnt): self.a = a; self.q = []; self.cnt = cnt
    def issue(self, ins, tag): self.a(ins); self.q.append(tag)
    def wait(self, tags):
        last = -1
        for i, t in enumerate(self.q):
            if t in tags: last = i
        if last >= 0:
            n = len(self.q) - 1 - last
            self.a(f"s_waitcnt {self.cnt}({n})")
            self.q = self.q[last+1:]

sW = 20
sT = 40
LDS_V = 24576
vQ = 8; vNM = 16; vS = [32, 48]; vP = 64; vPk2 = [80, 160]; vO = 88
vK = [104, 112]; vV = [120, 128]; vL = 136; vT = 138; vFloor = 140
vKa, vKn, vVa, vKb, vVb = 141, 142, 143, 145, 146
vDK, vDV = 147, 148
vTmp = 150
vKa2, vKn2 = 156, 157
sK = 8; sV = 12; sWs = 16; sCnt = 21; sThr = 22; sSlot = 23; sDoff = 24; sDslot = 25; sM0K = 26; sM0V = 27

def v_reads(fs, b):
    off = b * 2048
    return [f"ds_read_b64_tr_b16 {vr(vV[fs]+4*ks+2*h,2)}, v{vVa} offset:{off + (16*ks+8*h)*64}" for ks in range(2) for h in range(2)]
def kr(fs, b):
    va, vb = (vKa, vKa2) if b < 4 else (vKn, vKn2)
    off = (b & 3) * 2048
    return [f"ds_read_b128 {vr(vK[fs],4)}, v{va} offset:{off}", f"ds_read_b128 {vr(vK[fs]+4,4)}, v{vb} offset:{off}"]
def qk(sb, fs):
    return [f"v_mfma_f32_32x32x16_bf16 {vr(vS[sb],16)}, {vr(vK[fs],4)}, {vr(vQ,4)}, {vr(vNM,16)}",
            f"v_mfma_f32_32x32x16_bf16 {vr(vS[sb],16)}, {vr(vK[fs]+4,4)}, {vr(vQ+4,4)}, {vr(vS[sb],16)}"]
def pv(fs):
    return [f"v_mfma_f32_32x32x16_bf16 {vr(vO,16)}, {vr(vV[fs],4)}, {vr(vPk2[fs],4)}, {vr(vO,16)}",
            f"v_mfma_f32_32x32x16_bf16 {vr(vO,16)}, {vr(vV[fs]+4,4)}, {vr(vPk2[fs]+4,4)}, {vr(vO,16)}"]
vSel = 72; vD = 76; vLA = 136; vLB = 137
def P(r): return vP + (r & 7)
def softmax_part(sb, upto=16):
    L = []; S = vS[sb]; vPk = vPk2[sb]
    for r in range(upto):
        L.append(f"v_exp_f32 v{P(r)}, v{S+r}")
        if r >= 3 and r % 2 == 1:
            k = (r - 3) // 2
            L.append(f"v_cvt_pk_bf16_f32 v{vPk+k}, v{P(2*k)}, v{P(2*k+1)}")
    if upto == 16:
        L.append("s_nop 0")
        L.append(f"v_cvt_pk_bf16_f32 v{vPk+7}, v{P(14)}, v{P(15)}")
    return L
def summ(sb):
    return [f"v_mfma_f32_16x16x32_bf16 {vr(vD,4)}, {vr(vSel,4)}, {vr(vPk2[sb],4)}, 0",
            f"v_mfma_f32_16x16x32_bf16 {vr(vD,4)}, {vr(vSel,4)}, {vr(vPk2[sb]+4,4)}, {vr(vD,4)}"]

def attn_role(a):
    T = sT
    sH, sQB = T + 2, T + 3
    a(f"""
    s_mov_b32 s{sWs}, s{T}
    s_and_b32 s{sWs+1}, s{T+1}, 0xffff
    s_mov_b32 s{sWs+2}, {WS_BYTES}
    s_mov_b32 s{sWs+3}, 0x20000
    s_lshl_b32 s{T+4}, s{sH}, 17
    s_add_u32 s{T+5}, s{T+4}, {WS_QKV + 32*131072}
    s_add_u32 s{sK}, s{T}, s{T+5}
    s_addc_u32 s{sK+1}, s{T+1}, 0
    s_and_b32 s{sK+1}, s{sK+1}, 0xffff
    s_mov_b32 s{sK+2}, 131072
    s_mov_b32 s{sK+3}, 0x20000
    s_add_u32 s{T+5}, s{T+4}, {WS_QKV + 64*131072}
    s_add_u32 s{sV}, s{T}, s{T+5}
    s_addc_u32 s{sV+1}, s{T+1}, 0
    s_and_b32 s{sV+1}, s{sV+1}, 0xffff
    s_mov_b32 s{sV+2}, 131072
    s_mov_b32 s{sV+3}, 0x20000
    s_lshl_b32 s{T+5}, s{sW}, 11
    v_lshlrev_b32 v3, 4, v2
    v_add_u32 v{vDV}, s{T+5}, v3
    v_and_b32 v3, 3, v2
    v_bfe_u32 v4, v2, 4, 2
    v_xor_b32 v3, v3, v4
    v_lshrrev_b32 v4, 2, v2
    v_lshlrev_b32 v4, 6, v4
    v_lshl_add_u32 v3, v3, 4, v4
    v_add_u32 v{vDK}, s{T+5}, v3
    s_mov_b32 s{sM0K}, s{T+5}
    s_add_u32 s{sM0V}, s{T+5}, {LDS_V}
    s_mov_b32 s{sDoff}, 0
    s_mov_b32 s{sDslot}, 0
    """)
    def dma():
        return [f"s_add_u32 m0, s{sM0K}, s{sDslot}",
                f"s_nop 0\nbuffer_load_dwordx4 v{vDK}, {sr(sK,4)}, s{sDoff} offen lds",
                f"buffer_load_dwordx4 v{vDK}, {sr(sK,4)}, s{sDoff} offen offset:1024 lds",
                f"s_add_u32 m0, s{sM0V}, s{sDslot}",
                f"s_nop 0\nbuffer_load_dwordx4 v{vDV}, {sr(sV,4)}, s{sDoff} offen lds",
                f"buffer_load_dwordx4 v{vDV}, {sr(sV,4)}, s{sDoff} offen offset:1024 lds",
                f"s_add_u32 s{sDoff}, s{sDoff}, 8192\ns_add_u32 s{sDslot}, s{sDslot}, 8192\ns_cmp_eq_u32 s{sDslot}, 24576\ns_cselect_b32 s{sDslot}, 0, s{sDslot}"]
    for st in range(2):
        for x in dma(): a(x)
    a(f"""
    v_and_b32 v3, 31, v2
    v_lshrrev_b32 v4, 5, v2
    s_lshl_b32 s{T+5}, s{sQB}, 7
    s_lshl_b32 s{T+6}, s{sW}, 5
    s_add_u32 s{T+5}, s{T+5}, s{T+6}
    v_add_u32 v5, s{T+5}, v3
    v_lshlrev_b32 v6, 6, v5
    v_lshl_add_u32 v6, v4, 4, v6
    s_add_u32 s{T+6}, s{T+4}, {WS_QKV}
    buffer_load_dwordx4 {vr(vQ,4)}, v6, {sr(sWs,4)}, s{T+6} offen
    buffer_load_dwordx4 {vr(vQ+4,4)}, v6, {sr(sWs,4)}, s{T+6} offen offset:32
    v_lshrrev_b32 v7, 4, v5
    s_mov_b32 s{T+6}, {144*1024}
    v_mul_lo_u32 v7, v7, s{T+6}
    v_and_b32 v6, 15, v5
    v_lshl_add_u32 v6, v4, 4, v6
    v_lshl_add_u32 v7, v6, 4, v7
    s_lshl_b32 s{T+6}, s{sH}, 10
    v_add_u32 v7, s{T+6}, v7
    v_bfe_u32 v5, v3, 2, 2
    v_xor_b32 v5, v5, v4
    v_lshlrev_b32 v6, 6, v3
    v_lshl_add_u32 v{vKb}, v5, 4, v6
    v_bfe_u32 v5, v2, 2, 2
    v_lshl_add_u32 v5, v4, 2, v5
    v_lshlrev_b32 v5, 6, v5
    v_bfe_u32 v6, v2, 4, 1
    v_lshl_add_u32 v5, v6, 5, v5
    v_and_b32 v6, 3, v2
    v_lshl_add_u32 v5, v6, 3, v5
    v_add_u32 v{vVb}, {LDS_V}, v5
    v_mov_b32 v{vKa}, v{vKb}
    v_add_u32 v{vKn}, 8192, v{vKb}
    v_mov_b32 v{vVa}, v{vVb}
    s_mov_b32 s{sSlot}, 8192
    """)
    for r in range(16):
        a(f"v_mov_b32 v{vNM+r}, 0")
        a(f"v_mov_b32 v{vO+r}, 0")
    a(f"""
    v_mov_b32 v{vLA}, 0
    v_mov_b32 v{vLB}, 0
    s_mov_b32 s{sThr}, {THR}
    s_mov_b32 s{sCnt}, 16
    v_xor_b32 v{vKa2}, 32, v{vKa}
    v_xor_b32 v{vKn2}, 32, v{vKn}
    v_mov_b32 v{vTmp}, 0x3f803f80
    v_and_b32 v{vTmp+1}, 31, v2
    v_cmp_eq_u32 vcc, 0, v{vTmp+1}
    v_cmp_eq_u32 s[{T+8}:{T+9}], 17, v{vTmp+1}
    s_or_b64 vcc, vcc, s[{T+8}:{T+9}]
    s_nop 1
    v_cndmask_b32 v{vSel}, 0, v{vTmp}, vcc
    v_mov_b32 v{vSel+1}, v{vSel}
    v_mov_b32 v{vSel+2}, v{vSel}
    v_mov_b32 v{vSel+3}, v{vSel}
    v_mov_b32 v{vD}, 0
    v_mov_b32 v{vD+1}, 0
    s_waitcnt vmcnt(6)
    s_barrier
    """)
    for x in kr(0, 0) + kr(1, 1): a(x)
    for r in range(8):
        a(f"v_mov_b32 v{vPk2[1]+r}, 0")
        a(f"v_mov_b32 v{vV[1]+r}, 0")
    a("s_waitcnt vmcnt(0) lgkmcnt(2)")
    for x in qk(0, 0): a(x)
    a("s_memtime s[30:31]\ns_waitcnt lgkmcnt(0)\ns_nop 15\ns_nop 3")
    t = vTmp
    def rowmax(S):
        a(f"v_max3_f32 v{t}, v{S}, v{S+1}, v{S+2}")
        for r in range(3, 15, 2):
            a(f"v_max3_f32 v{t}, v{t}, v{S+r}, v{S+r+1}")
        a(f"""
        v_max_f32 v{t}, v{t}, v{S+15}
        v_mov_b32 v{t+1}, v{t}
        s_nop 1
        v_permlane32_swap_b32 v{t}, v{t+1}
        s_nop 1
        v_max_f32 v{t}, v{t}, v{t+1}
        """)
    rowmax(vS[0])
    a(f"v_sub_f32 v{vNM}, 0, v{t}")
    for r in range(1, 16): a(f"v_mov_b32 v{vNM+r}, v{vNM}")
    for r in range(16): a(f"v_sub_f32 v{vS[0]+r}, v{vS[0]+r}, v{t}")
    stampv(a, 158)
    a.label("L_at_loop")
    PM = os.environ.get("AT_PRIO", "frac4")
    if PM == "time":
        SLICE = int(os.environ.get("AT_SLICE", "12"))
        a(f"""
        s_lshr_b32 s30, s30, {SLICE}
        s_xor_b32 s30, s30, s28
        s_and_b32 s30, s30, 1
        """)
    elif PM == "static":
        a("s_cmp_eq_u32 s29, 0")
    elif PM == "stage":
        a("s_xor_b32 s28, s28, 1\ns_cmp_eq_u32 s28, 0")
    elif PM.startswith("frac"):
        N = int(PM[4:])
        a(f"""
        s_and_b32 s30, s{sCnt}, {N-1}
        s_cmp_eq_u32 s30, 0
        s_cselect_b32 s30, 1, 0
        s_xor_b32 s30, s30, s29
        s_cmp_eq_u32 s30, 0
        """)
    a("""
    s_cbranch_scc1 L_at_p0
    s_setprio 2
    s_branch L_at_p1
    """)
    a.label("L_at_p0")
    a("s_setprio 1")
    a.label("L_at_p1")
    if PM == "time": a("s_memtime s[30:31]")
    lq = Q(a, "lgkmcnt")
    lq.q = [("K", 1), ("K", 1), ("V", -1), ("V", -1), ("V", -1), ("V", -1)]
    def check(tag):
        a("s_nop 0")
        a(f"v_max_f32 v{t}, v{vD}, v{vD+1}")
        a(f"v_cmp_lt_f32 vcc, s{sThr}, v{t}")
        a(f"s_cbranch_vccnz L_at_rare{tag}")
        a.label(f"L_at_back{tag}")
        a(f"v_add_f32 v{vLA}, v{vLA}, v{vD}")
        a(f"v_add_f32 v{vLB}, v{vLB}, v{vD+1}")
    for b in range(4):
        sb = b & 1
        sm = softmax_part(sb)
        q1, q2 = qk(sb ^ 1, sb ^ 1)
        p1, p2 = pv(sb ^ 1)
        s1, s2 = summ(sb)
        krs = kr(sb, b + 2)
        vrs = v_reads(sb, b)
        ins = {1: [("r", krs[0], ("K", b + 2))], 2: [("r", krs[1], ("K", b + 2))],
               4: [("w", ("K", b + 1)), ("c", b), q1], 6: [("w", ("V", b - 1)), p1], 8: [q2],
               9: [("r", vrs[0], ("V", b))], 10: [("r", vrs[1], ("V", b))], 11: [s1],
               12: [p2], 13: [("r", vrs[2], ("V", b))], 14: [("r", vrs[3], ("V", b))]}
        e = 0
        for x in sm:
            if x.startswith("v_exp"):
                for y in ins.get(e, []):
                    if isinstance(y, tuple):
                        if y[0] == "w": lq.wait({y[1]})
                        elif y[0] == "c": check(b)
                        else: lq.issue(y[1], y[2])
                    else: a(y)
                e += 1
            a(x)
        a("s_nop 1")
        a(s2)
        if b == 1:
            a("s_waitcnt vmcnt(0) lgkmcnt(0)")
            lq.q = []
            a("s_barrier")
            a(f"s_cmp_le_u32 s{sCnt}, 2")
            a("s_cbranch_scc1 L_at_nodma")
            for x in dma(): a(x)
            a.label("L_at_nodma")
    assert lq.q == [("K", 5)] * 2 + [("V", 3)] * 4, lq.q
    a(f"""
    v_mov_b32 v{vKa}, v{vKn}
    v_mov_b32 v{vKa2}, v{vKn2}
    v_add_u32 v{vVa}, s{sSlot}, v{vVb}
    s_add_u32 s{sSlot}, s{sSlot}, 8192
    s_cmp_eq_u32 s{sSlot}, 24576
    s_cselect_b32 s{sSlot}, 0, s{sSlot}
    v_add_u32 v{vKn}, s{sSlot}, v{vKb}
    v_xor_b32 v{vKn2}, 32, v{vKn}
    s_sub_u32 s{sCnt}, s{sCnt}, 1
    s_cmp_lg_u32 s{sCnt}, 0
    s_cbranch_scc1 L_at_loop
    s_branch L_at_epi
    """)
    for b in (0, 1, 2, 3, "e"):
        sb = 0 if b == "e" else (b & 1)
        Sc, Sp = vS[sb], vS[sb ^ 1]
        a.label(f"L_at_rare{b}")
        rowmax(Sp)
        a(f"""
        v_max_f32 v{t}, 0, v{t}
        v_exp_f32 v{t+1}, -v{t}
        v_sub_f32 v{vNM}, v{vNM}, v{t}
        """)
        for r in range(1, 16): a(f"v_mov_b32 v{vNM+r}, v{vNM}")
        a(f"""
        v_mov_b32 v{t+2}, v{t+1}
        v_mov_b32 v{t+3}, v{t+1}
        s_nop 1
        v_permlane16_swap_b32 v{t+2}, v{t+3}
        s_nop 7
        v_mul_f32 v{vLA}, v{vLA}, v{t+1}
        v_mul_f32 v{vLB}, v{vLB}, v{t+3}
        """)
        for r in range(16): a(f"v_mul_f32 v{vO+r}, v{vO+r}, v{t+1}")
        for r in range(16):
            a(f"v_sub_f32 v{Sp+r}, v{Sp+r}, v{t}")
            if b != "e": a(f"v_sub_f32 v{Sc+r}, v{Sc+r}, v{t}")
        for x in softmax_part(sb ^ 1): a(x)
        a("s_nop 1")
        for x in summ(sb ^ 1): a(x)
        if b != "e":
            for x in softmax_part(sb, 4): a(x)
        a("s_nop 7\ns_nop 3")
        a(f"s_branch L_at_back{b}")
    a.label("L_at_epi")
    a("s_waitcnt lgkmcnt(0)\ns_nop 7")
    check("e")
    for x in pv(1): a(x)
    stampv(a, 159)
    vPk = vPk2[0]
    a(f"""
    s_nop 1
    v_permlane16_swap_b32 v{vLA}, v{vLB}
    s_nop 1
    v_mov_b32 v{t}, v{vLA}
    s_nop 1
    v_permlane32_swap_b32 v{t}, v{vLA}
    s_nop 1
    v_rcp_f32 v{t}, v{t}
    s_nop 7
    s_nop 7
    """)
    for r in range(16): a(f"v_mul_f32 v{vO+r}, v{vO+r}, v{t}")
    for r in range(8): a(f"v_cvt_pk_bf16_f32 v{vPk+r}, v{vO+2*r}, v{vO+2*r+1}")
    a("s_nop 1")
    for k in range(2):
        a(f"v_permlane32_swap_b32 v{vPk+4*k}, v{vPk+4*k+2}")
        a(f"v_permlane32_swap_b32 v{vPk+4*k+1}, v{vPk+4*k+3}")
    a(f"s_mov_b32 s{T+6}, {WS_AF}")
    for k in range(2):
        a(f"buffer_store_dwordx4 {vr(vPk+4*k,4)}, v7, {sr(sWs,4)}, s{T+6} offen offset:{512*k} sc1")
    a(f"""
    s_lshl_b32 s{T+10}, s{sQB}, 7
    s_lshl_b32 s{T+11}, s{sH}, 2
    s_add_u32 s{T+10}, s{T+10}, s{T+11}
    s_add_u32 s{T+10}, s{T+10}, {WS_CNT}
    v_mov_b32 v{t}, s{T+10}
    v_mov_b32 v{t+1}, 1
    s_waitcnt vmcnt(0) lgkmcnt(0)
    s_barrier
    s_cmp_lg_u32 s{sW}, 0
    s_cbranch_scc1 L_at_nosig
    s_mov_b64 exec, 1
    global_store_dword v{t}, v{t+1}, s[{T}:{T+1}] sc1
    s_mov_b64 exec, -1
    """)
    a.label("L_at_nosig")
    stamp_end(a, 158, 159, sW, "at", 32, 2)
    a("s_endpgm")

NST1 = 56
NST = 56
dAcc = 8
NAS = 4
dA = 72
dW = [136, 152]
dAo = 0
dBg = 2
dWa = 4
dsAF = 8; dsB = 12; dsX = 16; dsO = 24; dCnt = 21; dOffA = 22; dOffB = 23; dM0 = 28; dsWo = 30; dsDbg = 32; dMask = 34; dBit = 35

def dn_role(a):
    T = sT
    sMT, sNT = T + 2, T + 3
    a("v_mov_b32 v72, v2")
    a(f"""
    s_load_dwordx2 s[{T+4}:{T+5}], s[0:1], {KA_WD}
    s_load_dwordx2 s[{T+6}:{T+7}], s[0:1], {KA_X}
    s_load_dwordx2 s[{T+12}:{T+13}], s[0:1], {KA_WO}
    s_load_dwordx2 s[{T+14}:{T+15}], s[0:1], {KA_OUT}
    s_load_dwordx2 s[{dsDbg}:{dsDbg+1}], s[0:1], {KA_DBG}
    s_and_b32 s{T+8}, s{sW}, 1
    s_lshr_b32 s{T+9}, s{sW}, 1
    s_lshl_b32 s{T+10}, s{sMT}, 3
    s_lshl_b32 s{T+11}, s{T+8}, 2
    s_add_u32 s{T+10}, s{T+10}, s{T+11}
    s_mul_i32 s{T+11}, s{T+10}, 147456
    s_add_u32 s{T+11}, s{T+11}, {WS_AF}
    s_add_u32 s{dsAF}, s{T}, s{T+11}
    s_addc_u32 s{dsAF+1}, s{T+1}, 0
    s_and_b32 s{dsAF+1}, s{dsAF+1}, 0xffff
    s_mov_b32 s{dsAF+2}, {4*147456}
    s_mov_b32 s{dsAF+3}, 0x20000
    s_lshl_b32 s{dOffA}, s{T+9}, 10
    s_add_u32 s{dOffA}, s{dOffA}, {32*1024}
    v_and_b32 v73, 31, v72
    v_lshrrev_b32 v74, 5, v72
    v_lshrrev_b32 v75, 4, v73
    s_mov_b32 s{T+11}, 147456
    v_mul_lo_u32 v75, v75, s{T+11}
    v_and_b32 v76, 15, v73
    v_lshl_add_u32 v76, v74, 4, v76
    v_lshl_add_u32 v{dAo}, v76, 4, v75
    v_add_u32 v{dAo+1}, {2*147456}, v{dAo}
    s_waitcnt lgkmcnt(0)
    s_lshl_b32 s{T+11}, s{sNT}, 7
    s_add_u32 s{dsB}, s{T+4}, s{T+11}
    s_addc_u32 s{dsB+1}, s{T+5}, 0
    s_and_b32 s{dsB+1}, s{dsB+1}, 0xffff
    s_sub_u32 s{dsB+2}, {3584*2048}, s{T+11}
    s_mov_b32 s{dsB+3}, 0x20000
    s_add_u32 s{dsWo}, s{T+12}, s{T+11}
    s_addc_u32 s{dsWo+1}, s{T+13}, 0
    s_and_b32 s{dsWo+1}, s{dsWo+1}, 0xffff
    s_mov_b32 s{dOffB}, 0
    s_lshl_b32 s{dM0}, s{sW}, 11
    s_mov_b32 s{dsX}, s{T+6}
    s_and_b32 s{dsX+1}, s{T+7}, 0xffff
    s_mov_b32 s{dsX+2}, 0x400000
    s_mov_b32 s{dsX+3}, 0x20000
    s_mov_b32 s{dsO}, s{T+14}
    s_and_b32 s{dsO+1}, s{T+15}, 0xffff
    s_mov_b32 s{dsO+2}, 0x400000
    s_mov_b32 s{dsO+3}, 0x20000
    """)
    sMH, sKH = T + 8, T + 9
    a(f"""
    v_lshrrev_b32 v75, 3, v72
    v_bfe_u32 v76, v72, 4, 1
    v_lshlrev_b32 v76, 2, v76
    v_and_b32 v77, 7, v72
    v_xor_b32 v76, v76, v77
    s_lshl_b32 s{T+11}, s{sW}, 4
    v_add_u32 v75, s{T+11}, v75
    v_lshlrev_b32 v75, 11, v75
    v_lshl_add_u32 v{dBg}, v76, 4, v75
    v_add_u32 v{dBg+1}, {8*2048}, v{dBg}
    v_bfe_u32 v75, v72, 2, 2
    v_lshl_add_u32 v75, v74, 3, v75
    s_lshl_b32 s{T+11}, s{sKH}, 5
    v_add_u32 v75, s{T+11}, v75
    v_lshlrev_b32 v75, 7, v75
    v_bfe_u32 v76, v72, 4, 1
    v_lshl_add_u32 v75, v76, 5, v75
    v_and_b32 v76, 3, v72
    v_lshl_add_u32 v75, v76, 3, v75
    v_bfe_u32 v76, v72, 3, 1
    v_lshl_add_u32 v{dWa}, v76, 6, v75
    v_xor_b32 v{dWa+1}, 64, v{dWa}
    """)
    vq = Q(a, "vmcnt")
    def b_dma(t):
        slot = t % 4
        L = []
        if t == NST1:
            L.append((f"s_mov_b32 s{dsB}, s{dsWo}\ns_mov_b32 s{dsB+1}, s{dsWo+1}\ns_lshl_b32 s{T+11}, s{sNT}, 7\ns_sub_u32 s{dsB+2}, {1024*2048}, s{T+11}\ns_mov_b32 s{dOffB}, 0", None))
        L += [(f"s_add_u32 m0, s{dM0}, {8192*slot}", None),
                (f"buffer_load_dwordx4 v{dBg}, {sr(dsB,4)}, s{dOffB} offen lds\ns_add_u32 m0, m0, 0x400", ("B", t)),
                (f"buffer_load_dwordx4 v{dBg+1}, {sr(dsB,4)}, s{dOffB} offen lds\ns_add_u32 s{dOffB}, s{dOffB}, {64*2048}", ("B", t))]
        return L
    def a_ld(t):
        slot = t % NAS
        L = []
        sc = " sc1" if t >= NST1 else ""
        for i in range(2):
            for s in range(2):
                x = f"buffer_load_dwordx4 {vr(dA+16*slot+(i*2+s)*4,4)}, v{dAo+i}, {sr(dsAF,4)}, s{dOffA} offen offset:{512*s}{sc}"
                if i == 1 and s == 1: x += f"\ns_add_u32 s{dOffA}, s{dOffA}, 2048"
                L.append((x, ("A", t)))
        return L
    def w_rd(t):
        slot = t % 4; fs = t & 1
        L = []
        for s in range(2):
            for j in range(2):
                b = dW[fs] + (j * 2 + s) * 4
                off = 8192 * slot + 16 * s * 128
                L.append((f"ds_read_b64_tr_b16 {vr(b,2)}, v{dWa+j} offset:{off}", None))
                L.append((f"ds_read_b64_tr_b16 {vr(b+2,2)}, v{dWa+j} offset:{off+512}", None))
        return L
    def emit(it):
        if it[1] is None: a(it[0])
        else: vq.issue(it[0], it[1])
    for t in range(3):
        for it in b_dma(t):
            emit(it); a("s_nop 0")
        for it in a_ld(t): emit(it)
    if os.environ.get("DN_PF", "1") == "1":
        a(f"""
        s_and_b32 s{T+11}, s{sMT}, 3
        s_lshl_b32 s{T+11}, s{T+11}, 2
        s_add_u32 s{T+11}, s{T+11}, s{sW}
        s_lshl_b32 s{T+11}, s{T+11}, 17
        v_mbcnt_lo_u32_b32 v6, -1, 0
        v_mbcnt_hi_u32_b32 v6, -1, v6
        v_lshlrev_b32 v6, 11, v6
        v_add_u32 v6, s{T+11}, v6
        s_mov_b32 s36, s{dsWo}
        s_mov_b32 s37, s{dsWo+1}
        s_lshl_b32 s{T+12}, s{sNT}, 7
        s_sub_u32 s38, {1024*2048}, s{T+12}
        s_mov_b32 s39, 0x20000
        """)
        a(f"s_mov_b32 s33, {16*64*2048}")
    a(f"s_setprio {os.environ.get('DN_PRIO', '0')}")
    vq.wait({("B", 0)})
    a("s_barrier")
    for it in w_rd(0): emit(it)
    def step(t, rt, first=False):
        vq.wait({("A", t), ("B", t + 1)})
        a("s_waitcnt lgkmcnt(0)")
        if rt + 1 < NST: a("s_barrier")
        fills = []
        if rt + 1 < NST: fills += w_rd(t + 1)
        if rt + 3 < NST: fills += b_dma(t + 3)
        late = []
        if rt + 3 < NST:
            if rt + 3 >= NST1: late = a_ld(t + 3)
            else: fills += a_ld(t + 3)
        m = []
        fs = t & 1; slot = t % NAS
        for s in range(2):
            for j in range(2):
                for i in range(2):
                    c = dAcc + (j * 2 + i) * 16
                    cc = "0" if (first and s == 0) else vr(c, 16)
                    m.append((f"v_mfma_f32_32x32x16_bf16 {vr(c,16)}, {vr(dW[fs]+(j*2+s)*4,4)}, {vr(dA+16*slot+(i*2+s)*4,4)}, {cc}", None))
        if os.environ.get("DN_PF", "1") == "1":
            if rt in (4, 8):
                fills.append((f"buffer_load_dword v7, v6, {sr(dsB,4)}, s33 offen\ns_add_u32 s33, s33, {16*64*2048}", ("P", t)))
            if rt == 44:
                fills.append((f"buffer_load_dword v7, v6, s[36:39], 0 offen", ("P", t)))
        for it in interleave(m, fills, 0, 8): emit(it)
    for t in range(8): step(t, t, first=(t == 0))
    a(f"s_mov_b32 s{dCnt}, 3")
    a.label("L_dn_loop")
    q0 = list(vq.q)
    for t in range(8, 20): step(t, t)
    assert q0 == [(x, y - 12) for (x, y) in vq.q]
    a(f"""
    s_sub_u32 s{dCnt}, s{dCnt}, 1
    s_cmp_lg_u32 s{dCnt}, 0
    s_cbranch_scc1 L_dn_loop
    """)
    vq.q = [(x, y + 24) for (x, y) in vq.q]
    for t in range(44, NST): step(t, t)
    if STAMPS: a("s_memtime s[36:37]\ns_waitcnt lgkmcnt(0)")
    a(f"""
    s_barrier
    v_mbcnt_lo_u32_b32 v6, -1, 0
    v_mbcnt_hi_u32_b32 v6, -1, v6
    v_and_b32 v6, 31, v6
    v_lshlrev_b32 v6, 2, v6
    s_lshl_b32 s{T+11}, s{sMT}, 7
    s_add_u32 s{T+11}, s{T+11}, {WS_CNT}
    v_add_u32 v6, s{T+11}, v6
    s_mov_b32 s{T+12}, 0x40000
    s_mov_b32 s{dMask}, 0
    s_mov_b32 s{dBit}, 0x55555555
    s_lshl_b32 s{dBit}, s{dBit}, s{sKH}
    s_mov_b32 s{dsB}, s{dsWo}
    s_mov_b32 s{dsB+1}, s{dsWo+1}
    s_lshl_b32 s{T+11}, s{sNT}, 7
    s_sub_u32 s{dsB+2}, {1024*2048}, s{T+11}
    s_mul_i32 s{dM0}, s{sW}, 12288
    s_lshl_b32 s{T+11}, s{sKH}, 12
    s_sub_u32 s{T+11}, s{dM0}, s{T+11}
    v_add_u32 v{dWa}, s{T+11}, v{dWa}
    v_add_u32 v{dWa+1}, s{T+11}, v{dWa+1}
    s_lshl_b32 s{T+11}, s{sW}, 15
    v_subrev_u32 v{dBg}, s{T+11}, v{dBg}
    v_subrev_u32 v{dBg+1}, s{T+11}, v{dBg+1}
    """)
    vq.q = []
    for q in range(18):
        if q >= 2:
            vq.wait({("O", q - 2)})
            for s_ in range(2):
                for j in range(2):
                    b = dW[q & 1] + (j * 2 + s_) * 4
                    off = 4096 * ((q - 2) % 3) + 16 * s_ * 128
                    a(f"ds_read_b64_tr_b16 {vr(b,2)}, v{dWa+j} offset:{off}")
                    a(f"ds_read_b64_tr_b16 {vr(b+2,2)}, v{dWa+j} offset:{off+512}")
        if q < 16:
            a(f"""
            s_and_b32 s{T+11}, s{dMask}, s{dBit}
            s_cbranch_scc1 L_dn_go{q}
            """)
            a.label(f"L_dn_poll{q}")
            a(f"""
            global_load_dword v7, v6, s[{T}:{T+1}] sc1
            s_waitcnt vmcnt(0)
            v_cmp_ne_u32 vcc, 0, v7
            s_nop 3
            s_mov_b32 s{dMask}, vcc_lo
            s_sub_u32 s{T+12}, s{T+12}, 1
            s_cmp_eq_u32 s{T+12}, 0
            s_cselect_b32 s{dMask}, -1, s{dMask}
            s_and_b32 s{T+11}, s{dMask}, s{dBit}
            s_cbranch_scc1 L_dn_go{q}
            s_sleep 6
            s_branch L_dn_poll{q}
            """)
            a.label(f"L_dn_go{q}")
            a(f"""
            s_ff1_i32_b32 s{T+11}, s{T+11}
            s_bitset0_b32 s{dBit}, s{T+11}
            s_lshl_b32 s{dOffA}, s{T+11}, 10
            s_lshl_b32 s{dOffB}, s{T+11}, 16
            s_add_u32 m0, s{dM0}, {4096*(q%3)}
            s_add_u32 s{T+13}, s{dOffB}, {16*2048}
            """)
            for i in range(2):
                for s_ in range(2):
                    vq.issue(f"buffer_load_dwordx4 {vr(dA+16*(q%4)+(i*2+s_)*4,4)}, v{dAo+i}, {sr(dsAF,4)}, s{dOffA} offen offset:{512*s_} sc1", ("O", q))
            for k_ in range(4):
                so = dOffB if k_ < 2 else T + 13
                vq.issue(f"buffer_load_dwordx4 v{dBg+(k_&1)}, {sr(dsB,4)}, s{so} offen lds\ns_add_u32 m0, m0, 0x400\ns_nop 0", ("O", q))
        if q >= 2:
            a("s_waitcnt lgkmcnt(0)")
            for s_ in range(2):
                for j in range(2):
                    for i in range(2):
                        c = dAcc + (j * 2 + i) * 16
                        a(f"v_mfma_f32_32x32x16_bf16 {vr(c,16)}, {vr(dW[q&1]+(j*2+s_)*4,4)}, {vr(dA+16*((q-2)%4)+(i*2+s_)*4,4)}, {vr(c,16)}")
    vx = 72
    a(f"""
    v_mbcnt_lo_u32_b32 v2, -1, 0
    v_mbcnt_hi_u32_b32 v2, -1, v2
    v_and_b32 v3, 31, v2
    v_lshrrev_b32 v4, 5, v2
    s_lshl_b32 s{T+11}, s{sMT}, 7
    s_lshl_b32 s{T+12}, s{sMH}, 6
    s_add_u32 s{T+11}, s{T+11}, s{T+12}
    v_add_u32 v6, s{T+11}, v3
    v_lshlrev_b32 v6, 11, v6
    s_lshl_b32 s{T+11}, s{sNT}, 7
    s_lshl_b32 s{T+12}, s{sKH}, 6
    s_add_u32 s{T+11}, s{T+11}, s{T+12}
    v_add_u32 v6, s{T+11}, v6
    v_lshl_add_u32 v7, v4, 4, v6
    v_lshl_add_u32 v6, v4, 3, v6
    s_mov_b32 s{T+11}, {32*2048}
    """)
    for i in range(2):
        for aa in range(4):
            so = "0" if i == 0 else f"s{T+11}"
            a(f"buffer_load_dwordx2 {vr(vx+(i*4+aa)*2,2)}, v6, {sr(dsX,4)}, {so} offen offset:{16*aa}")
    a(f"""
    s_barrier
    s_lshl_b32 s{T+12}, s{sW}, 13
    s_xor_b32 s{T+13}, s{T+12}, 16384
    v_lshlrev_b32 v5, 4, v2
    v_add_u32 v{dAo}, s{T+13}, v5
    v_add_u32 v5, s{T+12}, v5
    s_cmp_eq_u32 s{sKH}, 0
    s_cbranch_scc1 L_dn_k0
    """)
    vp = 104
    for kh in (1, 0):
        keep = dAcc + kh * 32
        send = dAcc + (1 - kh) * 32
        for q in range(8):
            a(f"ds_write_b128 v{dAo}, {vr(send+4*q,4)} offset:{1024*q}")
        a("s_waitcnt lgkmcnt(0)\ns_barrier")
        for q in range(8):
            a(f"ds_read_b128 {vr(vp+4*q,4)}, v5 offset:{1024*q}")
        a("s_waitcnt vmcnt(0) lgkmcnt(0)")
        for q in range(8):
            x0 = vx + 2 * q; c = keep + 4 * q; p = vp + 4 * q
            a(f"""
            v_add_f32 v{c}, v{c}, v{p}
            v_add_f32 v{c+1}, v{c+1}, v{p+1}
            v_add_f32 v{c+2}, v{c+2}, v{p+2}
            v_add_f32 v{c+3}, v{c+3}, v{p+3}
            v_lshlrev_b32 v{p}, 16, v{x0}
            v_and_b32 v{p+1}, 0xffff0000, v{x0}
            v_lshlrev_b32 v{p+2}, 16, v{x0+1}
            v_and_b32 v{p+3}, 0xffff0000, v{x0+1}
            v_add_f32 v{c}, v{c}, v{p}
            v_add_f32 v{c+1}, v{c+1}, v{p+1}
            v_add_f32 v{c+2}, v{c+2}, v{p+2}
            v_add_f32 v{c+3}, v{c+3}, v{p+3}
            v_cvt_pk_bf16_f32 v{136+2*q}, v{c}, v{c+1}
            v_cvt_pk_bf16_f32 v{137+2*q}, v{c+2}, v{c+3}
            """)
        a("s_nop 1")
        for i in range(2):
            for k in range(2):
                b = 136 + 8 * i + 4 * k
                a(f"v_permlane32_swap_b32 v{b}, v{b+2}")
                a(f"v_permlane32_swap_b32 v{b+1}, v{b+3}")
        for i in range(2):
            for k in range(2):
                b = 136 + 8 * i + 4 * k
                so = "0" if i == 0 else f"s{T+11}"
                a(f"buffer_store_dwordx4 {vr(b,4)}, v7, {sr(dsO,4)}, {so} offen offset:{32*k}")
        if STAMPS: a("v_mov_b32 v3, s36\nv_mov_b32 v4, s96")
        stamp_end(a, 4, 3, sW, f"dn{kh}", 72, 2)
        a("s_endpgm")
        if kh == 1: a.label("L_dn_k0")

def gen_mid(a, name="mid_kernel"):
    kernel_header(a, name)
    T = sT
    stamp0(a)
    a(f"""
    s_setprio 3
    s_cmp_ge_u32 s2, {GRID}
    s_cbranch_scc1 L_mid_done
    s_load_dwordx2 s[{T}:{T+1}], s[0:1], {KA_WS}
    v_lshrrev_b32 v1, 6, v0
    v_and_b32 v2, 63, v0
    s_nop 0
    v_readfirstlane_b32 s{sW}, v1
    s_and_b32 s{T+4}, s2, 7
    s_lshr_b32 s{T+5}, s2, 3
    s_mov_b32 s{T+6}, 0x55555556
    s_mul_hi_u32 s{T+6}, s{T+5}, s{T+6}
    s_mul_i32 s{T+7}, s{T+6}, 3
    s_sub_u32 s{T+7}, s{T+5}, s{T+7}
    s_waitcnt lgkmcnt(0)
    s_cmp_eq_u32 s{T+7}, 2
    s_cbranch_scc1 L_mid_dn
    s_mov_b32 s28, s{T+7}
    s_lshr_b32 s29, s2, 8
    s_cmp_eq_u32 s29, 1
    s_cselect_b32 s{T+8}, 1, 0
    s_cmp_eq_u32 s28, 0
    s_cselect_b32 s{T+8}, s{T+8}, 0
    s_cmp_eq_u32 s29, 2
    s_cselect_b32 s29, 1, s{T+8}
    s_lshl_b32 s{T+6}, s{T+6}, 1
    s_add_u32 s{T+6}, s{T+6}, s{T+7}
    s_lshl_b32 s{T+2}, s{T+4}, 2
    s_and_b32 s{T+7}, s{T+6}, 3
    s_add_u32 s{T+2}, s{T+2}, s{T+7}
    s_lshr_b32 s{T+3}, s{T+6}, 2
    """)
    if 'dnonly' in EXPT: a("s_endpgm")
    attn_role(a)
    a.label("L_mid_dn")
    if 'atonly' in EXPT: a("s_endpgm")
    a(f"""
    s_lshr_b32 s{T+2}, s{T+4}, 1
    s_lshl_b32 s{T+2}, s{T+2}, 2
    s_and_b32 s{T+7}, s{T+6}, 3
    s_add_u32 s{T+2}, s{T+2}, s{T+7}
    s_and_b32 s{T+3}, s{T+4}, 1
    s_lshl_b32 s{T+3}, s{T+3}, 3
    s_lshr_b32 s{T+7}, s{T+6}, 2
    s_add_u32 s{T+3}, s{T+3}, s{T+7}
    """)
    dn_role(a)
    a.label("L_mid_done")
    a("s_endpgm")
    return descriptor(name, NVGPR, 102)
```

```python
from common import *
from stamps import *
import os
GRID = 768
BLOCK = 256
LDS_TOTAL = 49152
NVGPR = 168
EXPT = os.environ.get('AT_EXPT', '')
THR = 0x47800000
WS_D = 64 << 20

class Q:
    def __init__(self, a, cnt): self.a = a; self.q = []; self.cnt = cnt
    def issue(self, ins, tag): self.a(ins); self.q.append(tag)
    def wait(self, tags):
        last = -1
        for i, t in enumerate(self.q):
            if t in tags: last = i
        if last >= 0:
            n = len(self.q) - 1 - last
            self.a(f"s_waitcnt {self.cnt}({n})")
            self.q = self.q[last+1:]

sW = 20
sT = 40
LDS_V = 24576
vQ = 8; vNM = 16; vS = [32, 48]; vP = 64; vPk2 = [80, 160]; vO = 88
vK = [104, 112]; vV = [120, 128]; vL = 136; vT = 138; vFloor = 140
vKa, vKn, vVa, vKb, vVb = 141, 142, 143, 145, 146
vDK, vDV = 147, 148
vTmp = 150
vKa2, vKn2 = 156, 157
sK = 8; sV = 12; sWs = 16; sCnt = 21; sThr = 22; sSlot = 23; sDoff = 24; sDslot = 25; sM0K = 26; sM0V = 27

def v_reads(fs, b):
    off = b * 2048
    return [f"ds_read_b64_tr_b16 {vr(vV[fs]+4*ks+2*h,2)}, v{vVa} offset:{off + (16*ks+8*h)*64}" for ks in range(2) for h in range(2)]
def kr(fs, b):
    va, vb = (vKa, vKa2) if b < 4 else (vKn, vKn2)
    off = (b & 3) * 2048
    return [f"ds_read_b128 {vr(vK[fs],4)}, v{va} offset:{off}", f"ds_read_b128 {vr(vK[fs]+4,4)}, v{vb} offset:{off}"]
def qk(sb, fs):
    return [f"v_mfma_f32_32x32x16_bf16 {vr(vS[sb],16)}, {vr(vK[fs],4)}, {vr(vQ,4)}, {vr(vNM,16)}",
            f"v_mfma_f32_32x32x16_bf16 {vr(vS[sb],16)}, {vr(vK[fs]+4,4)}, {vr(vQ+4,4)}, {vr(vS[sb],16)}"]
def pv(fs):
    return [f"v_mfma_f32_32x32x16_bf16 {vr(vO,16)}, {vr(vV[fs],4)}, {vr(vPk2[fs],4)}, {vr(vO,16)}",
            f"v_mfma_f32_32x32x16_bf16 {vr(vO,16)}, {vr(vV[fs]+4,4)}, {vr(vPk2[fs]+4,4)}, {vr(vO,16)}"]
vSel = 72; vD = 76; vLA = 136; vLB = 137
def P(r): return vP + (r & 7)
def softmax_part(sb, upto=16):
    L = []; S = vS[sb]; vPk = vPk2[sb]
    for r in range(upto):
        L.append(f"v_exp_f32 v{P(r)}, v{S+r}")
        if r >= 3 and r % 2 == 1:
            k = (r - 3) // 2
            L.append(f"v_cvt_pk_bf16_f32 v{vPk+k}, v{P(2*k)}, v{P(2*k+1)}")
    if upto == 16:
        L.append("s_nop 0")
        L.append(f"v_cvt_pk_bf16_f32 v{vPk+7}, v{P(14)}, v{P(15)}")
    return L
def summ(sb):
    return [f"v_mfma_f32_16x16x32_bf16 {vr(vD,4)}, {vr(vSel,4)}, {vr(vPk2[sb],4)}, 0",
            f"v_mfma_f32_16x16x32_bf16 {vr(vD,4)}, {vr(vSel,4)}, {vr(vPk2[sb]+4,4)}, {vr(vD,4)}"]

def attn_role(a):
    T = sT
    sH, sQB = T + 2, T + 3
    a(f"""
    s_mov_b32 s{sWs}, s{T}
    s_and_b32 s{sWs+1}, s{T+1}, 0xffff
    s_mov_b32 s{sWs+2}, {WS_BYTES}
    s_mov_b32 s{sWs+3}, 0x20000
    s_lshl_b32 s{T+4}, s{sH}, 17
    s_add_u32 s{T+5}, s{T+4}, {WS_QKV + 32*131072}
    s_add_u32 s{sK}, s{T}, s{T+5}
    s_addc_u32 s{sK+1}, s{T+1}, 0
    s_and_b32 s{sK+1}, s{sK+1}, 0xffff
    s_mov_b32 s{sK+2}, 131072
    s_mov_b32 s{sK+3}, 0x20000
    s_add_u32 s{T+5}, s{T+4}, {WS_QKV + 64*131072}
    s_add_u32 s{sV}, s{T}, s{T+5}
    s_addc_u32 s{sV+1}, s{T+1}, 0
    s_and_b32 s{sV+1}, s{sV+1}, 0xffff
    s_mov_b32 s{sV+2}, 131072
    s_mov_b32 s{sV+3}, 0x20000
    s_lshl_b32 s{T+5}, s{sW}, 11
    v_lshlrev_b32 v3, 4, v2
    v_add_u32 v{vDV}, s{T+5}, v3
    v_and_b32 v3, 3, v2
    v_bfe_u32 v4, v2, 4, 2
    v_xor_b32 v3, v3, v4
    v_lshrrev_b32 v4, 2, v2
    v_lshlrev_b32 v4, 6, v4
    v_lshl_add_u32 v3, v3, 4, v4
    v_add_u32 v{vDK}, s{T+5}, v3
    s_mov_b32 s{sM0K}, s{T+5}
    s_add_u32 s{sM0V}, s{T+5}, {LDS_V}
    s_mov_b32 s{sDoff}, 0
    s_mov_b32 s{sDslot}, 0
    """)
    def dma():
        return [f"s_add_u32 m0, s{sM0K}, s{sDslot}",
                f"s_nop 0\nbuffer_load_dwordx4 v{vDK}, {sr(sK,4)}, s{sDoff} offen lds",
                f"buffer_load_dwordx4 v{vDK}, {sr(sK,4)}, s{sDoff} offen offset:1024 lds",
                f"s_add_u32 m0, s{sM0V}, s{sDslot}",
                f"s_nop 0\nbuffer_load_dwordx4 v{vDV}, {sr(sV,4)}, s{sDoff} offen lds",
                f"buffer_load_dwordx4 v{vDV}, {sr(sV,4)}, s{sDoff} offen offset:1024 lds",
                f"s_add_u32 s{sDoff}, s{sDoff}, 8192\ns_add_u32 s{sDslot}, s{sDslot}, 8192\ns_cmp_eq_u32 s{sDslot}, 24576\ns_cselect_b32 s{sDslot}, 0, s{sDslot}"]
    for st in range(2):
        for x in dma(): a(x)
    a(f"""
    v_and_b32 v3, 31, v2
    v_lshrrev_b32 v4, 5, v2
    s_lshl_b32 s{T+5}, s{sQB}, 7
    s_lshl_b32 s{T+6}, s{sW}, 5
    s_add_u32 s{T+5}, s{T+5}, s{T+6}
    v_add_u32 v5, s{T+5}, v3
    v_lshlrev_b32 v6, 6, v5
    v_lshl_add_u32 v6, v4, 4, v6
    s_add_u32 s{T+6}, s{T+4}, {WS_QKV}
    buffer_load_dwordx4 {vr(vQ,4)}, v6, {sr(sWs,4)}, s{T+6} offen
    buffer_load_dwordx4 {vr(vQ+4,4)}, v6, {sr(sWs,4)}, s{T+6} offen offset:32
    v_lshrrev_b32 v7, 4, v5
    s_mov_b32 s{T+6}, {144*1024}
    v_mul_lo_u32 v7, v7, s{T+6}
    v_and_b32 v6, 15, v5
    v_lshl_add_u32 v6, v4, 4, v6
    v_lshl_add_u32 v7, v6, 4, v7
    s_lshl_b32 s{T+6}, s{sH}, 10
    v_add_u32 v7, s{T+6}, v7
    v_bfe_u32 v5, v3, 2, 2
    v_xor_b32 v5, v5, v4
    v_lshlrev_b32 v6, 6, v3
    v_lshl_add_u32 v{vKb}, v5, 4, v6
    v_bfe_u32 v5, v2, 2, 2
    v_lshl_add_u32 v5, v4, 2, v5
    v_lshlrev_b32 v5, 6, v5
    v_bfe_u32 v6, v2, 4, 1
    v_lshl_add_u32 v5, v6, 5, v5
    v_and_b32 v6, 3, v2
    v_lshl_add_u32 v5, v6, 3, v5
    v_add_u32 v{vVb}, {LDS_V}, v5
    v_mov_b32 v{vKa}, v{vKb}
    v_add_u32 v{vKn}, 8192, v{vKb}
    v_mov_b32 v{vVa}, v{vVb}
    s_mov_b32 s{sSlot}, 8192
    """)
    for r in range(16):
        a(f"v_mov_b32 v{vNM+r}, 0")
        a(f"v_mov_b32 v{vO+r}, 0")
    a(f"""
    v_mov_b32 v{vLA}, 0
    v_mov_b32 v{vLB}, 0
    s_mov_b32 s{sThr}, {THR}
    s_mov_b32 s{sCnt}, 16
    v_xor_b32 v{vKa2}, 32, v{vKa}
    v_xor_b32 v{vKn2}, 32, v{vKn}
    v_mov_b32 v{vTmp}, 0x3f803f80
    v_and_b32 v{vTmp+1}, 31, v2
    v_cmp_eq_u32 vcc, 0, v{vTmp+1}
    v_cmp_eq_u32 s[{T+8}:{T+9}], 17, v{vTmp+1}
    s_or_b64 vcc, vcc, s[{T+8}:{T+9}]
    s_nop 1
    v_cndmask_b32 v{vSel}, 0, v{vTmp}, vcc
    v_mov_b32 v{vSel+1}, v{vSel}
    v_mov_b32 v{vSel+2}, v{vSel}
    v_mov_b32 v{vSel+3}, v{vSel}
    v_mov_b32 v{vD}, 0
    v_mov_b32 v{vD+1}, 0
    s_waitcnt vmcnt(6)
    s_barrier
    """)
    for x in kr(0, 0) + kr(1, 1): a(x)
    for r in range(8):
        a(f"v_mov_b32 v{vPk2[1]+r}, 0")
        a(f"v_mov_b32 v{vV[1]+r}, 0")
    a("s_waitcnt vmcnt(0) lgkmcnt(2)")
    for x in qk(0, 0): a(x)
    a("s_memtime s[30:31]\ns_waitcnt lgkmcnt(0)\ns_nop 15\ns_nop 3")
    t = vTmp
    def rowmax(S):
        a(f"v_max3_f32 v{t}, v{S}, v{S+1}, v{S+2}")
        for r in range(3, 15, 2):
            a(f"v_max3_f32 v{t}, v{t}, v{S+r}, v{S+r+1}")
        a(f"""
        v_max_f32 v{t}, v{t}, v{S+15}
        v_mov_b32 v{t+1}, v{t}
        s_nop 1
        v_permlane32_swap_b32 v{t}, v{t+1}
        s_nop 1
        v_max_f32 v{t}, v{t}, v{t+1}
        """)
    rowmax(vS[0])
    a(f"v_sub_f32 v{vNM}, 0, v{t}")
    for r in range(1, 16): a(f"v_mov_b32 v{vNM+r}, v{vNM}")
    for r in range(16): a(f"v_sub_f32 v{vS[0]+r}, v{vS[0]+r}, v{t}")
    stampv(a, 158)
    a.label("L_at_loop")
    PM = os.environ.get("AT_PRIO", "frac4")
    if PM == "time":
        SLICE = int(os.environ.get("AT_SLICE", "12"))
        a(f"""
        s_lshr_b32 s30, s30, {SLICE}
        s_xor_b32 s30, s30, s28
        s_and_b32 s30, s30, 1
        """)
    elif PM == "static":
        a("s_cmp_eq_u32 s29, 0")
    elif PM == "stage":
        a("s_xor_b32 s28, s28, 1\ns_cmp_eq_u32 s28, 0")
    elif PM.startswith("frac"):
        N = int(PM[4:])
        a(f"""
        s_and_b32 s30, s{sCnt}, {N-1}
        s_cmp_eq_u32 s30, 0
        s_cselect_b32 s30, 1, 0
        s_xor_b32 s30, s30, s29
        s_cmp_eq_u32 s30, 0
        """)
    a("""
    s_cbranch_scc1 L_at_p0
    s_setprio 2
    s_branch L_at_p1
    """)
    a.label("L_at_p0")
    a("s_setprio 1")
    a.label("L_at_p1")
    if PM == "time": a("s_memtime s[30:31]")
    lq = Q(a, "lgkmcnt")
    lq.q = [("K", 1), ("K", 1), ("V", -1), ("V", -1), ("V", -1), ("V", -1)]
    def check(tag):
        a("s_nop 0")
        a(f"v_add_f32 v{t}, v{vD}, v{vD+1}")
        a(f"v_cmp_nge_f32 vcc, s{sThr}, v{t}")
        a(f"s_cbranch_vccnz L_at_rare{tag}")
        a.label(f"L_at_back{tag}")
        a(f"v_add_f32 v{vLA}, v{vLA}, v{vD}")
        a(f"v_add_f32 v{vLB}, v{vLB}, v{vD+1}")
    for b in range(4):
        sb = b & 1
        sm = softmax_part(sb)
        q1, q2 = qk(sb ^ 1, sb ^ 1)
        p1, p2 = pv(sb ^ 1)
        s1, s2 = summ(sb)
        krs = kr(sb, b + 2)
        vrs = v_reads(sb, b)
        ins = {1: [("r", krs[0], ("K", b + 2))], 2: [("r", krs[1], ("K", b + 2))],
               4: [("w", ("K", b + 1)), ("c", b), q1], 6: [("w", ("V", b - 1)), p1], 8: [q2],
               9: [("r", vrs[0], ("V", b))], 10: [("r", vrs[1], ("V", b))], 11: [s1],
               12: [p2], 13: [("r", vrs[2], ("V", b))], 14: [("r", vrs[3], ("V", b))]}
        e = 0
        for x in sm:
            if x.startswith("v_exp"):
                for y in ins.get(e, []):
                    if isinstance(y, tuple):
                        if y[0] == "w": lq.wait({y[1]})
                        elif y[0] == "c": check(b)
                        else: lq.issue(y[1], y[2])
                    else: a(y)
                e += 1
            a(x)
        a("s_nop 1")
        a(s2)
        if b == 1:
            a("s_waitcnt vmcnt(0) lgkmcnt(0)")
            lq.q = []
            a("s_barrier")
            a(f"s_cmp_le_u32 s{sCnt}, 2")
            a("s_cbranch_scc1 L_at_nodma")
            for x in dma(): a(x)
            a.label("L_at_nodma")
    assert lq.q == [("K", 5)] * 2 + [("V", 3)] * 4, lq.q
    a(f"""
    v_mov_b32 v{vKa}, v{vKn}
    v_mov_b32 v{vKa2}, v{vKn2}
    v_add_u32 v{vVa}, s{sSlot}, v{vVb}
    s_add_u32 s{sSlot}, s{sSlot}, 8192
    s_cmp_eq_u32 s{sSlot}, 24576
    s_cselect_b32 s{sSlot}, 0, s{sSlot}
    v_add_u32 v{vKn}, s{sSlot}, v{vKb}
    v_xor_b32 v{vKn2}, 32, v{vKn}
    s_sub_u32 s{sCnt}, s{sCnt}, 1
    s_cmp_lg_u32 s{sCnt}, 0
    s_cbranch_scc1 L_at_loop
    s_branch L_at_epi
    """)
    for b in (0, 1, 2, 3, "e"):
        sb = 0 if b == "e" else (b & 1)
        Sc, Sp = vS[sb], vS[sb ^ 1]
        a.label(f"L_at_rare{b}")
        rowmax(Sp)
        a(f"""
        v_max_f32 v{t}, 0, v{t}
        v_exp_f32 v{t+1}, -v{t}
        v_sub_f32 v{vNM}, v{vNM}, v{t}
        """)
        for r in range(1, 16): a(f"v_mov_b32 v{vNM+r}, v{vNM}")
        a(f"""
        v_mov_b32 v{t+2}, v{t+1}
        v_mov_b32 v{t+3}, v{t+1}
        s_nop 1
        v_permlane16_swap_b32 v{t+2}, v{t+3}
        s_nop 7
        v_mul_f32 v{vLA}, v{vLA}, v{t+1}
        v_mul_f32 v{vLB}, v{vLB}, v{t+3}
        """)
        for r in range(16): a(f"v_mul_f32 v{vO+r}, v{vO+r}, v{t+1}")
        for r in range(16):
            a(f"v_sub_f32 v{Sp+r}, v{Sp+r}, v{t}")
            if b != "e": a(f"v_sub_f32 v{Sc+r}, v{Sc+r}, v{t}")
        for x in softmax_part(sb ^ 1): a(x)
        a("s_nop 1")
        for x in summ(sb ^ 1): a(x)
        if b != "e":
            for x in softmax_part(sb, 4): a(x)
        a("s_nop 7\ns_nop 3")
        a(f"s_branch L_at_back{b}")
    a.label("L_at_epi")
    a("s_waitcnt lgkmcnt(0)\ns_nop 7")
    check("e")
    for x in pv(1): a(x)
    stampv(a, 159)
    vPk = vPk2[0]
    a(f"""
    s_nop 1
    v_permlane16_swap_b32 v{vLA}, v{vLB}
    s_nop 1
    v_mov_b32 v{t}, v{vLA}
    s_nop 1
    v_permlane32_swap_b32 v{t}, v{vLA}
    s_nop 1
    v_rcp_f32 v{t}, v{t}
    s_nop 7
    s_nop 7
    """)
    for r in range(16): a(f"v_mul_f32 v{vO+r}, v{vO+r}, v{t}")
    for r in range(8): a(f"v_cvt_pk_bf16_f32 v{vPk+r}, v{vO+2*r}, v{vO+2*r+1}")
    a("s_nop 1")
    for k in range(2):
        a(f"v_permlane32_swap_b32 v{vPk+4*k}, v{vPk+4*k+2}")
        a(f"v_permlane32_swap_b32 v{vPk+4*k+1}, v{vPk+4*k+3}")
    a(f"s_mov_b32 s{T+6}, {WS_AF}")
    for k in range(2):
        a(f"buffer_store_dwordx4 {vr(vPk+4*k,4)}, v7, {sr(sWs,4)}, s{T+6} offen offset:{512*k} sc1")
    a(f"""
    s_lshl_b32 s{T+10}, s{sQB}, 7
    s_lshl_b32 s{T+11}, s{sH}, 2
    s_add_u32 s{T+10}, s{T+10}, s{T+11}
    s_add_u32 s{T+10}, s{T+10}, {WS_CNT}
    v_mov_b32 v{t}, s{T+10}
    v_mov_b32 v{t+1}, 1
    s_waitcnt vmcnt(0) lgkmcnt(0)
    s_barrier
    s_cmp_lg_u32 s{sW}, 0
    s_cbranch_scc1 L_at_nosig
    s_mov_b64 exec, 1
    global_store_dword v{t}, v{t+1}, s[{T}:{T+1}] sc1
    s_mov_b64 exec, -1
    """)
    a.label("L_at_nosig")
    stamp_end(a, 158, 159, sW, "at", 32, 2)
    a("s_endpgm")

NST1 = 56
NST = 56
dAcc = 8
NAS = 4
dA = 72
dW = [136, 152]
dAo = 0
dBg = 2
dWa = 4
dsAF = 8; dsB = 12; dsX = 16; dsO = 24; dCnt = 21; dOffA = 22; dOffB = 23; dM0 = 28; dsWo = 30; dsDbg = 32; dMask = 34; dBit = 35

def dn_role(a):
    T = sT
    sMT, sNT = T + 2, T + 3
    a("v_mov_b32 v72, v2")
    a(f"""
    s_load_dwordx2 s[{T+4}:{T+5}], s[0:1], {KA_WD}
    s_load_dwordx2 s[{T+6}:{T+7}], s[0:1], {KA_X}
    s_load_dwordx2 s[{T+12}:{T+13}], s[0:1], {KA_WO}
    s_load_dwordx2 s[{T+14}:{T+15}], s[0:1], {KA_OUT}
    s_load_dwordx2 s[{dsDbg}:{dsDbg+1}], s[0:1], {KA_DBG}
    s_and_b32 s{T+8}, s{sW}, 1
    s_lshr_b32 s{T+9}, s{sW}, 1
    s_lshl_b32 s{T+10}, s{sMT}, 3
    s_lshl_b32 s{T+11}, s{T+8}, 2
    s_add_u32 s{T+10}, s{T+10}, s{T+11}
    s_mul_i32 s{T+11}, s{T+10}, 147456
    s_add_u32 s{T+11}, s{T+11}, {WS_AF}
    s_add_u32 s{dsAF}, s{T}, s{T+11}
    s_addc_u32 s{dsAF+1}, s{T+1}, 0
    s_and_b32 s{dsAF+1}, s{dsAF+1}, 0xffff
    s_mov_b32 s{dsAF+2}, {4*147456}
    s_mov_b32 s{dsAF+3}, 0x20000
    s_lshl_b32 s{dOffA}, s{T+9}, 10
    s_add_u32 s{dOffA}, s{dOffA}, {32*1024}
    v_and_b32 v73, 31, v72
    v_lshrrev_b32 v74, 5, v72
    v_lshrrev_b32 v75, 4, v73
    s_mov_b32 s{T+11}, 147456
    v_mul_lo_u32 v75, v75, s{T+11}
    v_and_b32 v76, 15, v73
    v_lshl_add_u32 v76, v74, 4, v76
    v_lshl_add_u32 v{dAo}, v76, 4, v75
    v_add_u32 v{dAo+1}, {2*147456}, v{dAo}
    s_waitcnt lgkmcnt(0)
    s_lshl_b32 s{T+11}, s{sNT}, 7
    s_add_u32 s{dsB}, s{T+4}, s{T+11}
    s_addc_u32 s{dsB+1}, s{T+5}, 0
    s_and_b32 s{dsB+1}, s{dsB+1}, 0xffff
    s_sub_u32 s{dsB+2}, {3584*2048}, s{T+11}
    s_mov_b32 s{dsB+3}, 0x20000
    s_add_u32 s{dsWo}, s{T+12}, s{T+11}
    s_addc_u32 s{dsWo+1}, s{T+13}, 0
    s_and_b32 s{dsWo+1}, s{dsWo+1}, 0xffff
    s_mov_b32 s{dOffB}, 0
    s_lshl_b32 s{dM0}, s{sW}, 11
    s_mov_b32 s{dsX}, s{T+6}
    s_and_b32 s{dsX+1}, s{T+7}, 0xffff
    s_mov_b32 s{dsX+2}, 0x400000
    s_mov_b32 s{dsX+3}, 0x20000
    s_mov_b32 s{dsO}, s{T+14}
    s_and_b32 s{dsO+1}, s{T+15}, 0xffff
    s_mov_b32 s{dsO+2}, 0x400000
    s_mov_b32 s{dsO+3}, 0x20000
    """)
    sMH, sKH = T + 8, T + 9
    a(f"""
    v_lshrrev_b32 v75, 3, v72
    v_bfe_u32 v76, v72, 4, 1
    v_lshlrev_b32 v76, 2, v76
    v_and_b32 v77, 7, v72
    v_xor_b32 v76, v76, v77
    s_lshl_b32 s{T+11}, s{sW}, 4
    v_add_u32 v75, s{T+11}, v75
    v_lshlrev_b32 v75, 11, v75
    v_lshl_add_u32 v{dBg}, v76, 4, v75
    v_add_u32 v{dBg+1}, {8*2048}, v{dBg}
    v_bfe_u32 v75, v72, 2, 2
    v_lshl_add_u32 v75, v74, 3, v75
    s_lshl_b32 s{T+11}, s{sKH}, 5
    v_add_u32 v75, s{T+11}, v75
    v_lshlrev_b32 v75, 7, v75
    v_bfe_u32 v76, v72, 4, 1
    v_lshl_add_u32 v75, v76, 5, v75
    v_and_b32 v76, 3, v72
    v_lshl_add_u32 v75, v76, 3, v75
    v_bfe_u32 v76, v72, 3, 1
    v_lshl_add_u32 v{dWa}, v76, 6, v75
    v_xor_b32 v{dWa+1}, 64, v{dWa}
    """)
    vq = Q(a, "vmcnt")
    def b_dma(t):
        slot = t % 4
        L = []
        if t == NST1:
            L.append((f"s_mov_b32 s{dsB}, s{dsWo}\ns_mov_b32 s{dsB+1}, s{dsWo+1}\ns_lshl_b32 s{T+11}, s{sNT}, 7\ns_sub_u32 s{dsB+2}, {1024*2048}, s{T+11}\ns_mov_b32 s{dOffB}, 0", None))
        L += [(f"s_add_u32 m0, s{dM0}, {8192*slot}", None),
                (f"buffer_load_dwordx4 v{dBg}, {sr(dsB,4)}, s{dOffB} offen lds\ns_add_u32 m0, m0, 0x400", ("B", t)),
                (f"buffer_load_dwordx4 v{dBg+1}, {sr(dsB,4)}, s{dOffB} offen lds\ns_add_u32 s{dOffB}, s{dOffB}, {64*2048}", ("B", t))]
        return L
    def a_ld(t):
        slot = t % NAS
        L = []
        sc = " sc1" if t >= NST1 else ""
        for i in range(2):
            for s in range(2):
                x = f"buffer_load_dwordx4 {vr(dA+16*slot+(i*2+s)*4,4)}, v{dAo+i}, {sr(dsAF,4)}, s{dOffA} offen offset:{512*s}{sc}"
                if i == 1 and s == 1: x += f"\ns_add_u32 s{dOffA}, s{dOffA}, 2048"
                L.append((x, ("A", t)))
        return L
    def w_rd(t):
        slot = t % 4; fs = t & 1
        L = []
        for s in range(2):
            for j in range(2):
                b = dW[fs] + (j * 2 + s) * 4
                off = 8192 * slot + 16 * s * 128
                L.append((f"ds_read_b64_tr_b16 {vr(b,2)}, v{dWa+j} offset:{off}", None))
                L.append((f"ds_read_b64_tr_b16 {vr(b+2,2)}, v{dWa+j} offset:{off+512}", None))
        return L
    def emit(it):
        if it[1] is None: a(it[0])
        else: vq.issue(it[0], it[1])
    for t in range(3):
        for it in b_dma(t):
            emit(it); a("s_nop 0")
        for it in a_ld(t): emit(it)
    if os.environ.get("DN_PF", "1") == "1":
        a(f"""
        s_and_b32 s{T+11}, s{sMT}, 3
        s_lshl_b32 s{T+11}, s{T+11}, 2
        s_add_u32 s{T+11}, s{T+11}, s{sW}
        s_lshl_b32 s{T+11}, s{T+11}, 17
        v_mbcnt_lo_u32_b32 v6, -1, 0
        v_mbcnt_hi_u32_b32 v6, -1, v6
        v_lshlrev_b32 v6, 11, v6
        v_add_u32 v6, s{T+11}, v6
        s_mov_b32 s36, s{dsWo}
        s_mov_b32 s37, s{dsWo+1}
        s_lshl_b32 s{T+12}, s{sNT}, 7
        s_sub_u32 s38, {1024*2048}, s{T+12}
        s_mov_b32 s39, 0x20000
        """)
        a(f"s_mov_b32 s33, {16*64*2048}")
    a(f"""
    v_mbcnt_lo_u32_b32 v152, -1, 0
    v_mbcnt_hi_u32_b32 v152, -1, v152
    v_and_b32 v153, 31, v152
    v_lshrrev_b32 v154, 5, v152
    s_lshl_b32 s{T+11}, s{sMT}, 7
    s_lshl_b32 s{T+12}, s{sMH}, 6
    s_add_u32 s{T+11}, s{T+11}, s{T+12}
    v_add_u32 v155, s{T+11}, v153
    v_lshlrev_b32 v155, 11, v155
    s_lshl_b32 s{T+11}, s{sNT}, 7
    s_lshl_b32 s{T+12}, s{sKH}, 6
    s_add_u32 s{T+11}, s{T+11}, s{T+12}
    v_add_u32 v155, s{T+11}, v155
    v_lshl_add_u32 v155, v154, 3, v155
    s_mov_b32 s{T+11}, {32*2048}
    """)
    for i in range(2):
        for aa in range(4):
            so = "0" if i == 0 else f"s{T+11}"
            vq.issue(f"buffer_load_dwordx2 {vr(136+(i*4+aa)*2,2)}, v155, {sr(dsX,4)}, {so} offen offset:{16*aa}", ("X", 0))
    vq.wait({("X", 0)})
    a(f"s_cmp_eq_u32 s{sKH}, 0\ns_cbranch_scc1 L_dn_x0")
    for kh in (1, 0):
        keep = dAcc + kh * 32; oth = dAcc + (1 - kh) * 32
        for q in range(8):
            a(f"""
            v_lshlrev_b32 v{keep+4*q}, 16, v{136+2*q}
            v_and_b32 v{keep+4*q+1}, 0xffff0000, v{136+2*q}
            v_lshlrev_b32 v{keep+4*q+2}, 16, v{137+2*q}
            v_and_b32 v{keep+4*q+3}, 0xffff0000, v{137+2*q}
            """)
        for r in range(32): a(f"v_mov_b32 v{oth+r}, 0")
        if kh == 1:
            a("s_branch L_dn_x1")
            a.label("L_dn_x0")
    a.label("L_dn_x1")
    a(f"s_setprio {os.environ.get('DN_PRIO', '0')}")
    vq.wait({("B", 0)})
    a("s_barrier")
    for it in w_rd(0): emit(it)
    def step(t, rt, first=False):
        vq.wait({("A", t), ("B", t + 1)})
        a("s_waitcnt lgkmcnt(0)")
        if rt + 1 < NST: a("s_barrier")
        fills = []
        if rt + 1 < NST: fills += w_rd(t + 1)
        if rt + 3 < NST: fills += b_dma(t + 3)
        late = []
        if rt + 3 < NST:
            if rt + 3 >= NST1: late = a_ld(t + 3)
            else: fills += a_ld(t + 3)
        m = []
        fs = t & 1; slot = t % NAS
        for s in range(2):
            for j in range(2):
                for i in range(2):
                    c = dAcc + (j * 2 + i) * 16
                    cc = vr(c, 16)
                    m.append((f"v_mfma_f32_32x32x16_bf16 {vr(c,16)}, {vr(dW[fs]+(j*2+s)*4,4)}, {vr(dA+16*slot+(i*2+s)*4,4)}, {cc}", None))
        if os.environ.get("DN_PF", "1") == "1":
            if rt in (4, 8):
                fills.append((f"buffer_load_dword v7, v6, {sr(dsB,4)}, s33 offen\ns_add_u32 s33, s33, {16*64*2048}", ("P", t)))
            if rt == 44:
                fills.append((f"buffer_load_dword v7, v6, s[36:39], 0 offen", ("P", t)))
        for it in interleave(m, fills, 0, 8): emit(it)
    for t in range(8): step(t, t, first=(t == 0))
    a(f"s_mov_b32 s{dCnt}, 3")
    a.label("L_dn_loop")
    q0 = list(vq.q)
    for t in range(8, 20): step(t, t)
    assert q0 == [(x, y - 12) for (x, y) in vq.q]
    a(f"""
    s_sub_u32 s{dCnt}, s{dCnt}, 1
    s_cmp_lg_u32 s{dCnt}, 0
    s_cbranch_scc1 L_dn_loop
    """)
    vq.q = [(x, y + 24) for (x, y) in vq.q]
    for t in range(44, NST): step(t, t)
    if STAMPS: a("s_memtime s[36:37]\ns_waitcnt lgkmcnt(0)")
    a(f"s_setprio {os.environ.get('DN_OPRIO', '3')}")
    a(f"""
    s_barrier
    v_mbcnt_lo_u32_b32 v6, -1, 0
    v_mbcnt_hi_u32_b32 v6, -1, v6
    v_and_b32 v6, 31, v6
    v_lshlrev_b32 v6, 2, v6
    s_lshl_b32 s{T+11}, s{sMT}, 7
    s_add_u32 s{T+11}, s{T+11}, {WS_CNT}
    v_add_u32 v6, s{T+11}, v6
    s_mov_b32 s{T+12}, 0x40000
    s_mov_b32 s{dMask}, 0
    s_mov_b32 s{dBit}, 0x55555555
    s_lshl_b32 s{dBit}, s{dBit}, s{sKH}
    s_mov_b32 s{dsB}, s{dsWo}
    s_mov_b32 s{dsB+1}, s{dsWo+1}
    s_lshl_b32 s{T+11}, s{sNT}, 7
    s_sub_u32 s{dsB+2}, {1024*2048}, s{T+11}
    s_mul_i32 s{dM0}, s{sW}, 12288
    s_lshl_b32 s{T+11}, s{sKH}, 12
    s_sub_u32 s{T+11}, s{dM0}, s{T+11}
    v_add_u32 v{dWa}, s{T+11}, v{dWa}
    v_add_u32 v{dWa+1}, s{T+11}, v{dWa+1}
    s_lshl_b32 s{T+11}, s{sW}, 15
    v_subrev_u32 v{dBg}, s{T+11}, v{dBg}
    v_subrev_u32 v{dBg+1}, s{T+11}, v{dBg+1}
    """)
    vq.q = []
    for q in range(18):
        if q >= 2:
            vq.wait({("O", q - 2)})
            for s_ in range(2):
                for j in range(2):
                    b = dW[q & 1] + (j * 2 + s_) * 4
                    off = 4096 * ((q - 2) % 3) + 16 * s_ * 128
                    a(f"ds_read_b64_tr_b16 {vr(b,2)}, v{dWa+j} offset:{off}")
                    a(f"ds_read_b64_tr_b16 {vr(b+2,2)}, v{dWa+j} offset:{off+512}")
        if q < 16:
            a(f"""
            s_and_b32 s{T+11}, s{dMask}, s{dBit}
            s_cbranch_scc1 L_dn_go{q}
            """)
            a.label(f"L_dn_poll{q}")
            a(f"""
            global_load_dword v7, v6, s[{T}:{T+1}] sc1
            s_waitcnt vmcnt(0)
            v_cmp_ne_u32 vcc, 0, v7
            s_nop 3
            s_mov_b32 s{dMask}, vcc_lo
            s_sub_u32 s{T+12}, s{T+12}, 1
            s_cmp_eq_u32 s{T+12}, 0
            s_cselect_b32 s{dMask}, -1, s{dMask}
            s_and_b32 s{T+11}, s{dMask}, s{dBit}
            s_cbranch_scc1 L_dn_go{q}
            s_sleep {os.environ.get('DN_SLEEP', '6')}
            s_branch L_dn_poll{q}
            """)
            a.label(f"L_dn_go{q}")
            a(f"""
            s_ff1_i32_b32 s{T+11}, s{T+11}
            s_bitset0_b32 s{dBit}, s{T+11}
            s_lshl_b32 s{dOffA}, s{T+11}, 10
            s_lshl_b32 s{dOffB}, s{T+11}, 16
            s_add_u32 m0, s{dM0}, {4096*(q%3)}
            s_add_u32 s{T+13}, s{dOffB}, {16*2048}
            """)
            for i in range(2):
                for s_ in range(2):
                    vq.issue(f"buffer_load_dwordx4 {vr(dA+16*(q%4)+(i*2+s_)*4,4)}, v{dAo+i}, {sr(dsAF,4)}, s{dOffA} offen offset:{512*s_} sc1", ("O", q))
            for k_ in range(4):
                so = dOffB if k_ < 2 else T + 13
                vq.issue(f"buffer_load_dwordx4 v{dBg+(k_&1)}, {sr(dsB,4)}, s{so} offen lds\ns_add_u32 m0, m0, 0x400\ns_nop 0", ("O", q))
        if q >= 2:
            a("s_waitcnt lgkmcnt(0)")
            for s_ in range(2):
                for j in range(2):
                    for i in range(2):
                        c = dAcc + (j * 2 + i) * 16
                        a(f"v_mfma_f32_32x32x16_bf16 {vr(c,16)}, {vr(dW[q&1]+(j*2+s_)*4,4)}, {vr(dA+16*((q-2)%4)+(i*2+s_)*4,4)}, {vr(c,16)}")
    vx = 72
    a(f"""
    v_mbcnt_lo_u32_b32 v2, -1, 0
    v_mbcnt_hi_u32_b32 v2, -1, v2
    v_and_b32 v3, 31, v2
    v_lshrrev_b32 v4, 5, v2
    s_lshl_b32 s{T+11}, s{sMT}, 7
    s_lshl_b32 s{T+12}, s{sMH}, 6
    s_add_u32 s{T+11}, s{T+11}, s{T+12}
    v_add_u32 v6, s{T+11}, v3
    v_lshlrev_b32 v6, 11, v6
    s_lshl_b32 s{T+11}, s{sNT}, 7
    s_lshl_b32 s{T+12}, s{sKH}, 6
    s_add_u32 s{T+11}, s{T+11}, s{T+12}
    v_add_u32 v6, s{T+11}, v6
    v_lshl_add_u32 v7, v4, 4, v6
    v_lshl_add_u32 v6, v4, 3, v6
    s_mov_b32 s{T+11}, {32*2048}
    """)
    a(f"""
    s_nop 7
    s_barrier
    s_lshl_b32 s{T+12}, s{sW}, 13
    s_xor_b32 s{T+13}, s{T+12}, 16384
    v_lshlrev_b32 v5, 4, v2
    v_add_u32 v{dAo}, s{T+13}, v5
    v_add_u32 v5, s{T+12}, v5
    s_cmp_eq_u32 s{sKH}, 0
    s_cbranch_scc1 L_dn_k0
    """)
    vp = 104
    for kh in (1, 0):
        keep = dAcc + kh * 32
        send = dAcc + (1 - kh) * 32
        for q in range(8):
            a(f"ds_write_b128 v{dAo}, {vr(send+4*q,4)} offset:{1024*q}")
        a("s_waitcnt lgkmcnt(0)\ns_barrier")
        for q in range(8):
            a(f"ds_read_b128 {vr(vp+4*q,4)}, v5 offset:{1024*q}")
        a("s_waitcnt vmcnt(0) lgkmcnt(0)")
        for q in range(8):
            x0 = vx + 2 * q; c = keep + 4 * q; p = vp + 4 * q
            a(f"""
            v_add_f32 v{c}, v{c}, v{p}
            v_add_f32 v{c+1}, v{c+1}, v{p+1}
            v_add_f32 v{c+2}, v{c+2}, v{p+2}
            v_add_f32 v{c+3}, v{c+3}, v{p+3}
            v_cvt_pk_bf16_f32 v{136+2*q}, v{c}, v{c+1}
            v_cvt_pk_bf16_f32 v{137+2*q}, v{c+2}, v{c+3}
            """)
        a("s_nop 1")
        for i in range(2):
            for k in range(2):
                b = 136 + 8 * i + 4 * k
                a(f"v_permlane32_swap_b32 v{b}, v{b+2}")
                a(f"v_permlane32_swap_b32 v{b+1}, v{b+3}")
        for i in range(2):
            for k in range(2):
                b = 136 + 8 * i + 4 * k
                so = "0" if i == 0 else f"s{T+11}"
                a(f"buffer_store_dwordx4 {vr(b,4)}, v7, {sr(dsO,4)}, {so} offen offset:{32*k}")
        if STAMPS: a("v_mov_b32 v3, s36\nv_mov_b32 v4, s96")
        stamp_end(a, 4, 3, sW, f"dn{kh}", 72, 2)
        a("s_endpgm")
        if kh == 1: a.label("L_dn_k0")

def gen_mid(a, name="mid_kernel"):
    kernel_header(a, name)
    T = sT
    stamp0(a)
    a(f"""
    s_setprio 3
    s_cmp_ge_u32 s2, {GRID}
    s_cbranch_scc1 L_mid_done
    s_load_dwordx2 s[{T}:{T+1}], s[0:1], {KA_WS}
    v_lshrrev_b32 v1, 6, v0
    v_and_b32 v2, 63, v0
    s_nop 0
    v_readfirstlane_b32 s{sW}, v1
    s_and_b32 s{T+4}, s2, 7
    s_lshr_b32 s{T+5}, s2, 3
    s_mov_b32 s{T+6}, 0x55555556
    s_mul_hi_u32 s{T+6}, s{T+5}, s{T+6}
    s_mul_i32 s{T+7}, s{T+6}, 3
    s_sub_u32 s{T+7}, s{T+5}, s{T+7}
    s_waitcnt lgkmcnt(0)
    s_cmp_eq_u32 s{T+7}, 2
    s_cbranch_scc1 L_mid_dn
    s_mov_b32 s28, s{T+7}
    s_lshr_b32 s29, s2, 8
    s_cmp_eq_u32 s29, 1
    s_cselect_b32 s{T+8}, 1, 0
    s_cmp_eq_u32 s28, 0
    s_cselect_b32 s{T+8}, s{T+8}, 0
    s_cmp_eq_u32 s29, 2
    s_cselect_b32 s29, 1, s{T+8}
    s_lshl_b32 s{T+6}, s{T+6}, 1
    s_add_u32 s{T+6}, s{T+6}, s{T+7}
    s_lshl_b32 s{T+2}, s{T+4}, 2
    s_and_b32 s{T+7}, s{T+6}, 3
    s_add_u32 s{T+2}, s{T+2}, s{T+7}
    s_lshr_b32 s{T+3}, s{T+6}, 2
    """)
    if 'dnonly' in EXPT: a("s_endpgm")
    attn_role(a)
    a.label("L_mid_dn")
    if 'atonly' in EXPT: a("s_endpgm")
    a(f"""
    s_lshr_b32 s{T+2}, s{T+4}, 1
    s_lshl_b32 s{T+2}, s{T+2}, 2
    s_and_b32 s{T+7}, s{T+6}, 3
    s_add_u32 s{T+2}, s{T+2}, s{T+7}
    s_and_b32 s{T+3}, s{T+4}, 1
    s_lshl_b32 s{T+3}, s{T+3}, 3
    s_lshr_b32 s{T+7}, s{T+6}, 2
    s_add_u32 s{T+3}, s{T+3}, s{T+7}
    """)
    dn_role(a)
    a.label("L_mid_done")
    a("s_endpgm")
    return descriptor(name, NVGPR, 102)
```

```python
from common import *
from stamps import *
from k_ln import ln_compute
import os

NW = int(os.environ.get("G1_NW", "8"))
MT = 4 if NW == 8 else 8
PD = int(os.environ.get("G1_PD", "3"))
R = PD + 1
STAMPS = os.environ.get("STAMPS", "0") == "1"
ST = os.environ.get("G1_ST", "sc1")
FLN = os.environ.get("G1_FLN", "0") == "1"
ASC = " sc1" if FLN else ""
SNAKE = os.environ.get("G1_SNAKE", "0") == "1"
AGP = os.environ.get("G1_AGPR", "0") == "1"
LDS_A = [0, 32768]
LDS_B = [65536, 65536 + 40960]
LDS_TOTAL = 147456
BLOCK = NW * 64
NA = 32 // NW
NB = 40 // NW

vXa = 8
vWa = 10
vAg = 20
vBi = 28
vPF = 24
sPF = 32
PFD = int(os.environ.get('G1_PFD', '0'))
vXF = [32, 32 + 4 * MT]
vWF = 32 + 8 * MT
vEnd = vWF + 4 * R
if NW == 8:
    ACCV = 96
    assert vEnd <= ACCV
    NVGPR, ACCUM = 256, (96 if AGP else 256)
else:
    ACCV = 192
    assert vEnd <= ACCV
    NVGPR, ACCUM = 512, 256

def acc(j, i):
    idx = j * MT + i
    if NW == 8:
        if AGP: return f"a[{4*idx}:{4*idx+3}]"
        return f"v[{ACCV+4*idx}:{ACCV+4*idx+3}]"
    if idx < 64:
        return f"a[{4*idx}:{4*idx+3}]"
    return f"v[{ACCV+4*(idx-64)}:{ACCV+4*(idx-64)+3}]"

sA = 8
sB = 12
sOffA = 52
sCnt = 53
sW = 54
sM0A = 56
sM0B = 58
sFlag = 60
sDst = 65
sWs = 4
sT = 70

def w_read(stage, s, j, slot):
    off = (LDS_B[stage] - LDS_B[0]) + (32 * s) * 64
    b = vWF + 4 * slot
    return [f"ds_read_b64_tr_b16 {vr(b,2)}, v{vWa+j} offset:{off}",
            f"ds_read_b64_tr_b16 {vr(b+2,2)}, v{vWa+j} offset:{off+256}"]

def x_read(stage, s, i):
    return f"ds_read_b128 {vr(vXF[s]+4*i,4)}, v{vXa+s} offset:{LDS_A[stage]+2048*i}"

def dma(stage, pf=True):
    L = [f"s_mov_b32 m0, s{sM0A+stage}"]
    for j in range(NA):
        L.append(f"buffer_load_dwordx4 v{vAg+j}, {sr(sA,4)}, s{sOffA} offen{ASC} lds\n" +
                 ("s_add_u32 m0, m0, 0x400" if j < NA - 1 else f"s_mov_b32 m0, s{sM0B+stage}"))
    for i in range(NB):
        L.append(f"buffer_load_dwordx4 {vr(vBi,2)}, {sr(sB+4*i,4)}, 0 idxen offen lds\n" +
                 "s_add_u32 m0, m0, 0x1000")
    L.append(f"s_add_u32 s{sOffA}, s{sOffA}, 128\nv_add_u32 v{vBi}, 64, v{vBi}")
    if PFD and pf:
        L.append(f"buffer_load_dword v26, {vr(vPF,2)}, {sr(sPF,4)}, 0 idxen offen\nv_add_u32 v{vPF}, 64, v{vPF}")
    return L

class Sched:
    def __init__(self, a):
        self.a = a
        self.q = []
    def issue(self, instr, tag):
        self.a(instr); self.q.append(tag)
    def wait(self, tags):
        last = -1
        for i, t in enumerate(self.q):
            if t in tags: last = i
        if last >= 0:
            n = len(self.q) - 1 - last
            assert n <= 15
            self.a(f"s_waitcnt lgkmcnt({n})")
            self.q = self.q[last + 1:]
    def drain(self):
        self.a("s_waitcnt lgkmcnt(0)"); self.q = []

def group(sc, t, s, j, fills, first=False):
    a = sc.a
    n = (t * 20 + s * 10 + j)
    slot = n % R
    sc.wait({("W", n), ("X", t, s)})
    m = []
    order = list(range(MT))
    if SNAKE and (j & 1): order = order[::-1]
    for i in order:
        c = "0" if first else acc(j, i)
        m.append(f"v_mfma_f32_16x16x32_bf16 {acc(j,i)}, {vr(vWF+4*slot,4)}, {vr(vXF[s]+4*i,4)}, {c}")
    seq = interleave([(x, "M") for x in m], fills, 0, MT)
    for ins, tag in seq:
        if tag == "M" or tag is None:
            a(ins)
        else:
            sc.issue(ins, tag)

def wfill(n):
    t, r = divmod(n, 20)
    s, j = divmod(r, 10)
    return [(x, ("W", n)) for x in w_read(t & 1, s, j, n % R)]

def phase(a, t, lead=True, do_dma=True, tail=True, first=False):
    sc = Sched(a)
    order = []
    if lead:
        order += [(t, 1, j) for j in range(10 - PD, 10)]
    if tail:
        order += [(t + 1, 0, j) for j in range(10)] + [(t + 1, 1, j) for j in range(10 - PD)]
    fills = {g: [] for g in order}
    tn = t + 1
    if tail:
        xr = [(x_read(tn & 1, 0, i), ("X", tn, 0)) for i in range(MT)]
        if lead:
            for k, g in enumerate(order[:PD]):
                fills[g] += wfill(tn * 20 + k)
                lo = (MT * k) // PD; hi = (MT * (k + 1)) // PD
                fills[g] += xr[lo:hi]
        else:
            for ins, tag in xr: sc.issue(ins, tag)
            for k in range(PD):
                for ins, tag in wfill(tn * 20 + k): sc.issue(ins, tag)
        for (tt, s, j) in order:
            if tt == tn:
                n = tn * 20 + s * 10 + j
                if s * 10 + j + PD < 20:
                    fills[(tt, s, j)] += wfill(n + PD)
        xr1 = [(x_read(tn & 1, 1, i), ("X", tn, 1)) for i in range(MT)]
        for i in range(MT):
            fills[(tn, 0, 1 + (i * 8) // MT)].append(xr1[i])
    if do_dma:
        d = dma(t & 1)
        ng = min(len(order), 10)
        for k, x in enumerate(d):
            fills[order[(k * ng) // len(d)]].append((x, None))
    for g in order:
        group(sc, g[0], g[1], g[2], fills[g], first=(first and g[1] == 0))
    return sc

def barrier(a, pf=True):
    a(f"s_waitcnt vmcnt({1 if (pf and PFD) else 0}) lgkmcnt(0)")
    a("s_barrier")

def gen_gemm1(a, name="gemm1_kernel"):
    kernel_header(a, name)
    T = sT
    stamp0(a)
    a(f"""
    s_cmp_ge_u32 s2, 256
    s_cbranch_scc1 L_g1_done
    s_load_dwordx2 s[{T}:{T+1}], s[0:1], {KA_WQKV}
    s_load_dwordx2 s[{T+2}:{T+3}], s[0:1], {KA_WG}
    s_load_dwordx2 s[{T+4}:{T+5}], s[0:1], {KA_WU}
    s_load_dwordx2 s[{T+6}:{T+7}], s[0:1], {KA_WS}
    s_load_dwordx2 s[36:37], s[0:1], {KA_X}
    s_load_dwordx2 s[40:41], s[0:1], {KA_DBG}
    v_lshrrev_b32 v1, 6, v0
    v_and_b32 v2, 63, v0
    s_nop 0
    v_readfirstlane_b32 s{sW}, v1
    s_and_b32 s{T+8}, s2, 7
    s_lshr_b32 s{T+9}, s2, 3
    s_and_b32 s{T+10}, s{T+9}, 7
    s_lshr_b32 s{T+9}, s{T+9}, 3
    s_lshl_b32 s{T+8}, s{T+8}, 2
    s_add_u32 s{T+9}, s{T+9}, s{T+8}
    """)
    sRT, sCT = T + 10, T + 9
    sNGU, sUB, sCB = T + 11, T + 12, T + 13
    a(f"""
    s_cmp_eq_u32 s{sCT}, 9
    s_cselect_b32 s{sNGU}, 2, 5
    s_cselect_b32 s{sUB}, 6, 0
    s_mul_i32 s{sCB}, s{sCT}, 160
    s_sub_u32 s{sCB}, s{sCB}, {1600-64}
    s_cmp_eq_u32 s{sCT}, 9
    s_cselect_b32 s{sCB}, 0, s{sCB}
    s_waitcnt lgkmcnt(0)
    s_mov_b32 s{sWs}, s{T+6}
    s_and_b32 s{sWs+1}, s{T+7}, 0xffff
    s_mov_b32 s{sWs+2}, {WS_BYTES}
    s_mov_b32 s{sWs+3}, 0x20000
    s_lshl_b32 s{T+14}, s{sRT}, 19
    s_add_u32 s{sA}, s{T+6}, s{T+14}
    s_addc_u32 s{sA+1}, s{T+7}, 0
    s_and_b32 s{sA+1}, s{sA+1}, 0xffff
    s_sub_u32 s{sA+2}, 0x400000, s{T+14}
    s_mov_b32 s{sA+3}, 0x20000
    s_mov_b32 s{sOffA}, 0
    """)
    LO = 100
    if FLN:
        a(f"""
        s_and_b32 s37, s37, 0xffff
        s_mov_b32 s38, 0x400000
        s_mov_b32 s39, 0x20000
        s_lshl_b32 s{T+14}, s2, 3
        s_add_u32 s{T+14}, s{T+14}, s{sW}
        s_lshl_b32 s{T+14}, s{T+14}, 11
        v_lshlrev_b32 v{LO+1}, 4, v2
        v_add_u32 v{LO+1}, s{T+14}, v{LO+1}
        buffer_load_dwordx4 v[{LO+4}:{LO+7}], v{LO+1}, s[36:39], 0 offen
        buffer_load_dwordx4 v[{LO+8}:{LO+11}], v{LO+1}, s[36:39], 0 offen offset:1024
        """)
    a(f"""
    v_lshrrev_b32 v3, 3, v2
    v_lshrrev_b32 v4, 4, v2
    v_and_b32 v5, 7, v2
    s_mul_i32 s{T+14}, s{sW}, {8*NA}
    """)
    for j in range(NA):
        a(f"""
        v_add_u32 v6, {4*j}, v4
        v_and_b32 v6, 7, v6
        v_xor_b32 v6, v6, v5
        v_add_u32 v7, {8*j}, v3
        v_add_u32 v7, s{T+14}, v7
        v_lshlrev_b32 v7, 11, v7
        v_lshl_add_u32 v{vAg+j}, v6, 4, v7
        """)
    sKQ, sU0 = T + 14, T + 15
    a(f"""
    s_and_b32 s{sKQ}, s{sW}, 3
    s_lshr_b32 s{sU0}, s{sW}, 2
    s_mul_i32 s{sU0}, s{sU0}, 5
    s_lshl_b32 s{T+16}, s{sKQ}, 4
    v_lshrrev_b32 v3, 2, v2
    v_add_u32 v{vBi}, s{T+16}, v3
    v_and_b32 v4, 3, v2
    v_lshrrev_b32 v5, 5, v2
    v_lshlrev_b32 v5, 1, v5
    v_xor_b32 v4, v4, v5
    v_lshlrev_b32 v{vBi+1}, 4, v4
    s_mul_i32 s{T+16}, s{sCT}, 10
    """)
    def build_srd(b, uexpr):
        u, gu, ur, col, strd = [T + 17 + x for x in range(5)]
        a(uexpr.replace("DST", f"s{u}"))
        a(f"""
        s_add_u32 s{gu}, s{T+16}, s{u}
        s_sub_u32 s{ur}, s{u}, s{sUB}
        s_sub_u32 s{col}, s{ur}, s{sNGU}
        s_cmp_ge_u32 s{ur}, s{sNGU}
        s_cselect_b32 s{ur}, s{col}, s{ur}
        s_cselect_b32 s{b}, s{T+4}, s{T+2}
        s_cselect_b32 s{b+1}, s{T+5}, s{T+3}
        s_lshl_b32 s{col}, s{ur}, 5
        s_add_u32 s{col}, s{col}, s{sCB}
        s_lshl_b32 s{col}, s{col}, 1
        s_lshl_b32 s{ur}, s{gu}, 6
        s_cmp_lt_u32 s{gu}, 96
        s_cselect_b32 s{col}, s{ur}, s{col}
        s_cselect_b32 s{b}, s{T}, s{b}
        s_cselect_b32 s{b+1}, s{T+1}, s{b+1}
        s_cselect_b32 s{strd}, 6, 7
        s_lshl_b32 s{strd}, s{strd}, 26
        s_add_u32 s{b}, s{b}, s{col}
        s_addc_u32 s{b+1}, s{b+1}, 0
        s_and_b32 s{b+1}, s{b+1}, 0xffff
        s_or_b32 s{b+1}, s{b+1}, s{strd}
        s_mov_b32 s{b+2}, 1024
        s_mov_b32 s{b+3}, 0x20000
        """)
    a(f"""
    s_mul_i32 s{sM0A}, s{sW}, {NA*1024}
    s_add_u32 s{sM0A+1}, s{sM0A}, {LDS_A[1]}
    s_lshl_b32 s{sM0B}, s{sU0}, 12
    s_lshl_b32 s{T+16}, s{sKQ}, 10
    s_add_u32 s{sM0B}, s{sM0B}, s{T+16}
    s_add_u32 s{sM0B+1}, s{sM0B}, {LDS_B[1]}
    s_add_u32 s{sM0B}, s{sM0B}, {LDS_B[0]}
    """)
    def dmaA(st):
        a(f"s_mov_b32 m0, s{sM0A+st}\ns_nop 0")
        for j in range(NA):
            a(f"buffer_load_dwordx4 v{vAg+j}, {sr(sA,4)}, s{sOffA} offen{ASC} lds\ns_add_u32 m0, m0, 0x400\ns_nop 0")
        a(f"s_add_u32 s{sOffA}, s{sOffA}, 128")
    def dmaB(st):
        a(f"s_mov_b32 m0, s{sM0B+st}\ns_nop 0")
        for i in range(NB):
            a(f"buffer_load_dwordx4 {vr(vBi,2)}, {sr(sB+4*i,4)}, 0 idxen offen lds\ns_add_u32 m0, m0, 0x1000\ns_nop 0")
        a(f"v_add_u32 v{vBi}, 64, v{vBi}")
    a(f"s_mul_i32 s{T+16}, s{sCT}, 10")
    if not FLN: dmaA(0)
    for i in range(NB):
        build_srd(sB + 4 * i, f"s_add_u32 DST, s{sU0}, {i}")
        a(f"s_add_u32 m0, s{sM0B}, {0x1000*i}\ns_nop 0")
        a(f"buffer_load_dwordx4 {vr(vBi,2)}, {sr(sB+4*i,4)}, 0 idxen offen lds")
    a(f"v_add_u32 v{vBi}, 64, v{vBi}")
    if not FLN: dmaA(1)
    dmaB(1)
    if PFD:
        a(f"""
        s_mul_i32 s{T+16}, s{sCT}, 10
        s_lshl_b32 s{T+14}, s{sW}, 3
        s_add_u32 s{T+14}, s{T+14}, s{sRT}
        """)
        build_srd(sPF, f"s_min_u32 DST, s{T+14}, 9")
        a(f"""
        s_cmp_lt_u32 s{T+14}, 10
        s_cselect_b32 s{sPF+2}, 1024, 0
        v_add_u32 v{vPF}, 128, v2
        v_mov_b32 v{vPF+1}, 0
        """)
        for k in range(PFD - 2):
            a(f"buffer_load_dword v26, {vr(vPF,2)}, {sr(sPF,4)}, 0 idxen offen\nv_add_u32 v{vPF}, 64, v{vPF}")
    if FLN:
        npf = (PFD - 2) if PFD else 0
        a(f"s_waitcnt vmcnt({2*NB + npf})")
        ln_compute(a, LO, T + 17)
        a(f"""
        buffer_store_dwordx4 v[{LO+4}:{LO+7}], v{LO+1}, {sr(sWs,4)}, 0 offen sc1
        buffer_store_dwordx4 v[{LO+8}:{LO+11}], v{LO+1}, {sr(sWs,4)}, 0 offen offset:1024 sc1
        """)
    sWM, sWN = T + 14, T + 15
    WMN = NW // 2
    a(f"""
    s_and_b32 s{sWM}, s{sW}, {WMN-1}
    s_lshr_b32 s{sWN}, s{sW}, {1 if WMN == 2 else 2}
    v_and_b32 v3, 15, v2
    v_lshrrev_b32 v4, 4, v2
    v_lshrrev_b32 v5, 1, v3
    s_mul_i32 s{T+16}, s{sWM}, {16*MT}
    v_add_u32 v6, s{T+16}, v3
    v_lshlrev_b32 v6, 7, v6
    """)
    for s in range(2):
        a(f"""
        v_add_u32 v7, {4*s}, v4
        v_xor_b32 v7, v7, v5
        v_lshl_add_u32 v{vXa+s}, v7, 4, v6
        """)
    a(f"""
    v_lshrrev_b32 v5, 2, v2
    v_and_b32 v5, 3, v5
    v_lshl_add_u32 v5, v4, 3, v5
    v_lshlrev_b32 v5, 6, v5
    v_and_b32 v6, 3, v2
    v_lshl_add_u32 v5, v6, 3, v5
    v_add_u32 v5, {LDS_B[0]}, v5
    v_and_b32 v6, 1, v4
    v_lshlrev_b32 v6, 5, v6
    s_mul_i32 s{T+16}, s{sCT}, 10
    s_mul_i32 s{T+17}, s{sWN}, 5
    """)
    for j in range(5):
        t, gu, tp, lo, hi, h, x = [T + 18 + k for k in range(7)]
        a(f"""
        s_add_u32 s{t}, s{T+17}, {j}
        s_add_u32 s{gu}, s{T+16}, s{t}
        s_sub_u32 s{tp}, s{t}, s{sUB}
        s_and_b32 s{h}, s{tp}, 1
        s_lshr_b32 s{x}, s{tp}, 1
        s_add_u32 s{x}, s{x}, s{sUB}
        s_lshl_b32 s{lo}, s{x}, 12
        s_add_u32 s{x}, s{x}, s{sNGU}
        s_lshl_b32 s{hi}, s{x}, 12
        s_lshl_b32 s{x}, s{h}, 5
        s_add_u32 s{lo}, s{lo}, s{x}
        s_add_u32 s{hi}, s{hi}, s{x}
        s_lshl_b32 s{x}, s{tp}, 4
        s_add_u32 s{x}, s{x}, s{sCB}
        s_lshr_b32 s{sDst+j}, s{x}, 5
        s_lshl_b32 s{sDst+j}, s{sDst+j}, 10
        s_and_b32 s{x}, s{x}, 16
        s_lshl_b32 s{x}, s{x}, 5
        s_add_u32 s{sDst+j}, s{sDst+j}, s{x}
        s_add_u32 s{sDst+j}, s{sDst+j}, {WS_AF + 32*1024}
        s_lshl_b32 s{x}, s{gu}, 17
        s_add_u32 s{x}, s{x}, {WS_QKV}
        s_lshl_b32 s{t}, s{t}, 12
        s_add_u32 s{h}, s{t}, 32
        s_cmp_lt_u32 s{gu}, 32
        s_cselect_b32 s{sFlag+j}, 2, 1
        s_cmp_lt_u32 s{gu}, 96
        s_cselect_b32 s{sFlag+j}, s{sFlag+j}, 0
        s_cselect_b32 s{sDst+j}, s{x}, s{sDst+j}
        s_cselect_b32 s{lo}, s{t}, s{lo}
        s_cselect_b32 s{hi}, s{h}, s{hi}
        v_xor_b32 v7, s{lo}, v6
        v_add_u32 v{vWa+2*j}, v7, v5
        v_xor_b32 v7, s{hi}, v6
        v_add_u32 v{vWa+2*j+1}, v7, v5
        """)
    if FLN:
        a(f"""
        s_waitcnt vmcnt(0)
        s_barrier
        s_cmp_lg_u32 s{sW}, 0
        s_cbranch_scc1 L_g1_flagok
        v_mov_b32 v{LO}, s2
        v_mov_b32 v{LO+1}, 1
        s_mov_b64 exec, 1
        global_store_byte v{LO}, v{LO+1}, s[40:41] sc1
        s_mov_b64 exec, -1
        s_cmp_lg_u32 s2, 0
        s_cbranch_scc1 L_g1_nozero
        v_lshlrev_b32 v{LO}, 5, v2
        v_add_u32 v{LO}, {WS_CNT}, v{LO}
        v_mov_b32 v{LO+4}, 0
        v_mov_b32 v{LO+5}, 0
        v_mov_b32 v{LO+6}, 0
        v_mov_b32 v{LO+7}, 0
        buffer_store_dwordx4 v[{LO+4}:{LO+7}], v{LO}, {sr(sWs,4)}, 0 offen
        buffer_store_dwordx4 v[{LO+4}:{LO+7}], v{LO}, {sr(sWs,4)}, 0 offen offset:16
        """)
        a.label("L_g1_nozero")
        a(f"""
        v_and_b32 v{LO}, 7, v2
        v_lshlrev_b32 v{LO}, 2, v{LO}
        s_lshl_b32 s{T+16}, s{sRT}, 5
        v_add_u32 v{LO}, s{T+16}, v{LO}
        s_mov_b32 s{T+16}, 0x40000
        s_mov_b32 s{T+17}, 0x01010101
        """)
        a.label("L_g1_poll")
        a(f"""
        global_load_dword v{LO+1}, v{LO}, s[40:41] sc1
        s_waitcnt vmcnt(0)
        v_cmp_ne_u32 vcc, s{T+17}, v{LO+1}
        s_cbranch_vccz L_g1_flagok
        s_sub_u32 s{T+16}, s{T+16}, 1
        s_cmp_eq_u32 s{T+16}, 0
        s_cbranch_scc1 L_g1_flagok
        s_sleep 4
        s_branch L_g1_poll
        """)
        a.label("L_g1_flagok")
        a("s_barrier")
        dmaA(0); dmaA(1)
        a(f"s_waitcnt vmcnt({NA})")
        a("s_barrier")
    else:
        a(f"s_waitcnt vmcnt({NA+NB+(PFD-2 if PFD else 0)})")
        a("s_barrier")
    stampv(a, 30)
    phase(a, -1, lead=False, do_dma=False, first=True)
    a(f"s_waitcnt vmcnt({0 if FLN else (PFD-2 if PFD else 0)}) lgkmcnt(0)\ns_barrier")
    a(f"s_mov_b32 s{sCnt}, 7")
    a.label("L_g1_loop")
    phase(a, 0)
    barrier(a)
    phase(a, 1)
    barrier(a)
    a(f"""
    s_sub_u32 s{sCnt}, s{sCnt}, 1
    s_cmp_lg_u32 s{sCnt}, 0
    s_cbranch_scc1 L_g1_loop
    """)
    phase(a, 14, do_dma=False)
    a("s_waitcnt lgkmcnt(0)")
    phase(a, 15, do_dma=False, tail=False)
    stampv(a, 31)
    a(f"""
    s_lshl_b32 s{T+16}, s{sRT}, 8
    s_mul_i32 s{T+17}, s{sWM}, {16*MT}
    s_add_u32 s{T+16}, s{T+16}, s{T+17}
    v_add_u32 v5, s{T+16}, v3
    v_lshlrev_b32 v6, 6, v5
    v_lshl_add_u32 v6, v4, 4, v6
    v_lshrrev_b32 v7, 1, v4
    s_lshr_b32 s{T+16}, s{T+16}, 4
    v_add_u32 v7, s{T+16}, v7
    s_mov_b32 s{T+17}, {144*1024}
    v_mul_lo_u32 v7, v7, s{T+17}
    v_and_b32 v5, 1, v4
    v_lshl_add_u32 v5, v5, 4, v3
    v_lshl_add_u32 v7, v5, 4, v7
    s_mov_b32 s{T+18}, 0xbfb8aa3b
    s_nop 7
    """)
    tmpA = 32
    def accregs(j, i, tmp):
        s = acc(j, i)
        lo = int(s[2:s.index(":")])
        if s[0] == "v":
            return lo
        for r in range(4):
            a(f"v_accvgpr_read_b32 v{tmp+r}, a{lo+r}")
        return tmp
    for j in range(5):
        a(f"""
        s_cmp_eq_u32 s{sFlag+j}, 0
        s_cbranch_scc1 L_g1_eg{j}
        s_cmp_eq_u32 s{sFlag+j}, 2
        s_cselect_b32 s{T+19}, 0x3e8293ee, 1.0
        """)
        for i in range(MT):
            p = 64 + 4 * (i & 3)
            c0 = accregs(2 * j, i, 32)
            c1 = accregs(2 * j + 1, i, 36)
            for r in range(4):
                a(f"v_mul_f32 v{c0+r}, s{T+19}, v{c0+r}")
                a(f"v_mul_f32 v{c1+r}, s{T+19}, v{c1+r}")
            a(f"""
            v_cvt_pk_bf16_f32 v{p}, v{c0}, v{c0+1}
            v_cvt_pk_bf16_f32 v{p+1}, v{c0+2}, v{c0+3}
            v_cvt_pk_bf16_f32 v{p+2}, v{c1}, v{c1+1}
            v_cvt_pk_bf16_f32 v{p+3}, v{c1+2}, v{c1+3}
            s_nop 1
            v_permlane32_swap_b32 v{p}, v{p+2}
            v_permlane32_swap_b32 v{p+1}, v{p+3}
            s_nop 1
            v_permlane16_swap_b32 v{p}, v{p+2}
            v_permlane16_swap_b32 v{p+1}, v{p+3}
            """)
            off = 1024 * i
            if off >= 4096:
                if off % 4096 == 0:
                    a(f"s_add_u32 s{sDst+j}, s{sDst+j}, 4096")
                off %= 4096
            a(f"buffer_store_dwordx4 {vr(p,4)}, v6, {sr(sWs,4)}, s{sDst+j} offen offset:{off} {ST}")
        a(f"s_branch L_g1_en{j}")
        a.label(f"L_g1_eg{j}")
        for i2 in range(MT // 2):
            p = 64 + 4 * (i2 & 3)
            t = 48
            regs = []
            for k in range(2):
                g = accregs(2 * j, 2 * i2 + k, 32 + 8 * k)
                u = accregs(2 * j + 1, 2 * i2 + k, 36 + 8 * k)
                regs += [(g + r, u + r) for r in range(4)]
            for r in range(8): a(f"v_mul_f32 v{t+r}, s{T+18}, v{regs[r][0]}")
            for r in range(8): a(f"v_exp_f32 v{t+r}, v{t+r}")
            for r in range(8): a(f"v_add_f32 v{t+r}, 1.0, v{t+r}")
            for r in range(8): a(f"v_rcp_f32 v{t+r}, v{t+r}")
            for r in range(8): a(f"v_mul_f32 v{t+8+r}, v{regs[r][0]}, v{regs[r][1]}")
            for r in range(8): a(f"v_mul_f32 v{t+r}, v{t+r}, v{t+8+r}")
            for r in range(4): a(f"v_cvt_pk_bf16_f32 v{p+r}, v{t+2*r}, v{t+2*r+1}")
            a(f"""
            s_nop 1
            v_permlane32_swap_b32 v{p}, v{p+2}
            v_permlane32_swap_b32 v{p+1}, v{p+3}
            s_nop 1
            v_permlane16_swap_b32 v{p}, v{p+2}
            v_permlane16_swap_b32 v{p+1}, v{p+3}
            """)
            if i2 > 0:
                a(f"s_add_u32 s{sDst+j}, s{sDst+j}, {2*144*1024}")
            a(f"buffer_store_dwordx4 {vr(p,4)}, v7, {sr(sWs,4)}, s{sDst+j} offen {ST}")
        a.label(f"L_g1_en{j}")
        a("s_nop 1")
    stamp_end(a, 30, 31, sW, "g1", 32, 1)
    a.label("L_g1_done")
    a("s_endpgm")
    return descriptor(name, NVGPR, 102, ACCUM)
```

```python
from common import *
from stamps import *
import os
GRID = 768
BLOCK = 256
LDS_TOTAL = 49152
NVGPR = 168
EXPT = os.environ.get('AT_EXPT', '')
THR = 0x47800000
WS_D = 64 << 20

class Q:
    def __init__(self, a, cnt): self.a = a; self.q = []; self.cnt = cnt
    def issue(self, ins, tag): self.a(ins); self.q.append(tag)
    def wait(self, tags):
        last = -1
        for i, t in enumerate(self.q):
            if t in tags: last = i
        if last >= 0:
            n = len(self.q) - 1 - last
            self.a(f"s_waitcnt {self.cnt}({n})")
            self.q = self.q[last+1:]

sW = 20
sT = 40
LDS_V = 24576
vQ = 8; vNM = 16; vS = [32, 48]; vP = 64; vPk2 = [80, 160]; vO = 88
vK = [104, 112]; vV = [120, 128]; vL = 136; vT = 138; vFloor = 140
vKa, vKn, vVa, vKb, vVb = 141, 142, 143, 145, 146
vDK, vDV = 147, 148
vTmp = 150
vKa2, vKn2 = 156, 157
sK = 8; sV = 12; sWs = 16; sCnt = 21; sThr = 22; sSlot = 23; sDoff = 24; sDslot = 25; sM0K = 26; sM0V = 27

def v_reads(fs, b):
    off = b * 2048
    return [f"ds_read_b64_tr_b16 {vr(vV[fs]+4*ks+2*h,2)}, v{vVa} offset:{off + (16*ks+8*h)*64}" for ks in range(2) for h in range(2)]
def kr(fs, b):
    va, vb = (vKa, vKa2) if b < 4 else (vKn, vKn2)
    off = (b & 3) * 2048
    return [f"ds_read_b128 {vr(vK[fs],4)}, v{va} offset:{off}", f"ds_read_b128 {vr(vK[fs]+4,4)}, v{vb} offset:{off}"]
def qk(sb, fs):
    return [f"v_mfma_f32_32x32x16_bf16 {vr(vS[sb],16)}, {vr(vK[fs],4)}, {vr(vQ,4)}, {vr(vNM,16)}",
            f"v_mfma_f32_32x32x16_bf16 {vr(vS[sb],16)}, {vr(vK[fs]+4,4)}, {vr(vQ+4,4)}, {vr(vS[sb],16)}"]
def pv(fs):
    return [f"v_mfma_f32_32x32x16_bf16 {vr(vO,16)}, {vr(vV[fs],4)}, {vr(vPk2[fs],4)}, {vr(vO,16)}",
            f"v_mfma_f32_32x32x16_bf16 {vr(vO,16)}, {vr(vV[fs]+4,4)}, {vr(vPk2[fs]+4,4)}, {vr(vO,16)}"]
vSel = 72; vD = 76; vLA = 136; vLB = 137
def P(r): return vP + (r & 7)
def softmax_part(sb, upto=16):
    L = []; S = vS[sb]; vPk = vPk2[sb]
    for r in range(upto):
        L.append(f"v_exp_f32 v{P(r)}, v{S+r}")
        if r >= 3 and r % 2 == 1:
            k = (r - 3) // 2
            L.append(f"v_cvt_pk_bf16_f32 v{vPk+k}, v{P(2*k)}, v{P(2*k+1)}")
    if upto == 16:
        L.append("s_nop 0")
        L.append(f"v_cvt_pk_bf16_f32 v{vPk+7}, v{P(14)}, v{P(15)}")
    return L
def summ(sb):
    return [f"v_mfma_f32_16x16x32_bf16 {vr(vD,4)}, {vr(vSel,4)}, {vr(vPk2[sb],4)}, 0",
            f"v_mfma_f32_16x16x32_bf16 {vr(vD,4)}, {vr(vSel,4)}, {vr(vPk2[sb]+4,4)}, {vr(vD,4)}"]

def attn_role(a):
    T = sT
    sH, sQB = T + 2, T + 3
    a(f"""
    s_mov_b32 s{sWs}, s{T}
    s_and_b32 s{sWs+1}, s{T+1}, 0xffff
    s_mov_b32 s{sWs+2}, {WS_BYTES}
    s_mov_b32 s{sWs+3}, 0x20000
    s_lshl_b32 s{T+4}, s{sH}, 17
    s_add_u32 s{T+5}, s{T+4}, {WS_QKV + 32*131072}
    s_add_u32 s{sK}, s{T}, s{T+5}
    s_addc_u32 s{sK+1}, s{T+1}, 0
    s_and_b32 s{sK+1}, s{sK+1}, 0xffff
    s_mov_b32 s{sK+2}, 131072
    s_mov_b32 s{sK+3}, 0x20000
    s_add_u32 s{T+5}, s{T+4}, {WS_QKV + 64*131072}
    s_add_u32 s{sV}, s{T}, s{T+5}
    s_addc_u32 s{sV+1}, s{T+1}, 0
    s_and_b32 s{sV+1}, s{sV+1}, 0xffff
    s_mov_b32 s{sV+2}, 131072
    s_mov_b32 s{sV+3}, 0x20000
    s_lshl_b32 s{T+5}, s{sW}, 11
    v_lshlrev_b32 v3, 4, v2
    v_add_u32 v{vDV}, s{T+5}, v3
    v_and_b32 v3, 3, v2
    v_bfe_u32 v4, v2, 4, 2
    v_xor_b32 v3, v3, v4
    v_lshrrev_b32 v4, 2, v2
    v_lshlrev_b32 v4, 6, v4
    v_lshl_add_u32 v3, v3, 4, v4
    v_add_u32 v{vDK}, s{T+5}, v3
    s_mov_b32 s{sM0K}, s{T+5}
    s_add_u32 s{sM0V}, s{T+5}, {LDS_V}
    s_mov_b32 s{sDoff}, 0
    s_mov_b32 s{sDslot}, 0
    """)
    def dma():
        return [f"s_add_u32 m0, s{sM0K}, s{sDslot}",
                f"s_nop 0\nbuffer_load_dwordx4 v{vDK}, {sr(sK,4)}, s{sDoff} offen lds",
                f"buffer_load_dwordx4 v{vDK}, {sr(sK,4)}, s{sDoff} offen offset:1024 lds",
                f"s_add_u32 m0, s{sM0V}, s{sDslot}",
                f"s_nop 0\nbuffer_load_dwordx4 v{vDV}, {sr(sV,4)}, s{sDoff} offen lds",
                f"buffer_load_dwordx4 v{vDV}, {sr(sV,4)}, s{sDoff} offen offset:1024 lds",
                f"s_add_u32 s{sDoff}, s{sDoff}, 8192\ns_add_u32 s{sDslot}, s{sDslot}, 8192\ns_cmp_eq_u32 s{sDslot}, 24576\ns_cselect_b32 s{sDslot}, 0, s{sDslot}"]
    for st in range(2):
        for x in dma(): a(x)
    a(f"""
    v_and_b32 v3, 31, v2
    v_lshrrev_b32 v4, 5, v2
    s_lshl_b32 s{T+5}, s{sQB}, 7
    s_lshl_b32 s{T+6}, s{sW}, 5
    s_add_u32 s{T+5}, s{T+5}, s{T+6}
    v_add_u32 v5, s{T+5}, v3
    v_lshlrev_b32 v6, 6, v5
    v_lshl_add_u32 v6, v4, 4, v6
    s_add_u32 s{T+6}, s{T+4}, {WS_QKV}
    buffer_load_dwordx4 {vr(vQ,4)}, v6, {sr(sWs,4)}, s{T+6} offen
    buffer_load_dwordx4 {vr(vQ+4,4)}, v6, {sr(sWs,4)}, s{T+6} offen offset:32
    v_lshrrev_b32 v7, 4, v5
    s_mov_b32 s{T+6}, {144*1024}
    v_mul_lo_u32 v7, v7, s{T+6}
    v_and_b32 v6, 15, v5
    v_lshl_add_u32 v6, v4, 4, v6
    v_lshl_add_u32 v7, v6, 4, v7
    s_lshl_b32 s{T+6}, s{sH}, 10
    v_add_u32 v7, s{T+6}, v7
    v_bfe_u32 v5, v3, 2, 2
    v_xor_b32 v5, v5, v4
    v_lshlrev_b32 v6, 6, v3
    v_lshl_add_u32 v{vKb}, v5, 4, v6
    v_bfe_u32 v5, v2, 2, 2
    v_lshl_add_u32 v5, v4, 2, v5
    v_lshlrev_b32 v5, 6, v5
    v_bfe_u32 v6, v2, 4, 1
    v_lshl_add_u32 v5, v6, 5, v5
    v_and_b32 v6, 3, v2
    v_lshl_add_u32 v5, v6, 3, v5
    v_add_u32 v{vVb}, {LDS_V}, v5
    v_mov_b32 v{vKa}, v{vKb}
    v_add_u32 v{vKn}, 8192, v{vKb}
    v_mov_b32 v{vVa}, v{vVb}
    s_mov_b32 s{sSlot}, 8192
    """)
    for r in range(16):
        a(f"v_mov_b32 v{vNM+r}, 0")
        a(f"v_mov_b32 v{vO+r}, 0")
    a(f"""
    v_mov_b32 v{vLA}, 0
    v_mov_b32 v{vLB}, 0
    s_mov_b32 s{sThr}, {THR}
    s_mov_b32 s{sCnt}, 16
    v_xor_b32 v{vKa2}, 32, v{vKa}
    v_xor_b32 v{vKn2}, 32, v{vKn}
    v_mov_b32 v{vTmp}, 0x3f803f80
    v_and_b32 v{vTmp+1}, 31, v2
    v_cmp_eq_u32 vcc, 0, v{vTmp+1}
    v_cmp_eq_u32 s[{T+8}:{T+9}], 17, v{vTmp+1}
    s_or_b64 vcc, vcc, s[{T+8}:{T+9}]
    s_nop 1
    v_cndmask_b32 v{vSel}, 0, v{vTmp}, vcc
    v_mov_b32 v{vSel+1}, v{vSel}
    v_mov_b32 v{vSel+2}, v{vSel}
    v_mov_b32 v{vSel+3}, v{vSel}
    v_mov_b32 v{vD}, 0
    v_mov_b32 v{vD+1}, 0
    s_waitcnt vmcnt(6)
    s_barrier
    """)
    for x in kr(0, 0) + kr(1, 1): a(x)
    for r in range(8):
        a(f"v_mov_b32 v{vPk2[1]+r}, 0")
        a(f"v_mov_b32 v{vV[1]+r}, 0")
    a("s_waitcnt vmcnt(0) lgkmcnt(2)")
    for x in qk(0, 0): a(x)
    a("s_memtime s[30:31]\ns_waitcnt lgkmcnt(0)\ns_nop 15\ns_nop 3")
    t = vTmp
    def rowmax(S):
        a(f"v_max3_f32 v{t}, v{S}, v{S+1}, v{S+2}")
        for r in range(3, 15, 2):
            a(f"v_max3_f32 v{t}, v{t}, v{S+r}, v{S+r+1}")
        a(f"""
        v_max_f32 v{t}, v{t}, v{S+15}
        v_mov_b32 v{t+1}, v{t}
        s_nop 1
        v_permlane32_swap_b32 v{t}, v{t+1}
        s_nop 1
        v_max_f32 v{t}, v{t}, v{t+1}
        """)
    rowmax(vS[0])
    a(f"v_sub_f32 v{vNM}, 0, v{t}")
    for r in range(1, 16): a(f"v_mov_b32 v{vNM+r}, v{vNM}")
    for r in range(16): a(f"v_sub_f32 v{vS[0]+r}, v{vS[0]+r}, v{t}")
    stampv(a, 158)
    a.label("L_at_loop")
    PM = os.environ.get("AT_PRIO", "stage")
    if PM == "time":
        SLICE = int(os.environ.get("AT_SLICE", "12"))
        a(f"""
        s_lshr_b32 s30, s30, {SLICE}
        s_xor_b32 s30, s30, s28
        s_and_b32 s30, s30, 1
        """)
    elif PM == "static":
        a("s_cmp_eq_u32 s29, 0")
    elif PM == "stage":
        a("s_xor_b32 s28, s28, 1\ns_cmp_eq_u32 s28, 0")
    elif PM.startswith("frac"):
        N = int(PM[4:])
        a(f"""
        s_and_b32 s30, s{sCnt}, {N-1}
        s_cmp_eq_u32 s30, 0
        s_cselect_b32 s30, 1, 0
        s_xor_b32 s30, s30, s29
        s_cmp_eq_u32 s30, 0
        """)
    a("""
    s_cbranch_scc1 L_at_p0
    s_setprio 2
    s_branch L_at_p1
    """)
    a.label("L_at_p0")
    a("s_setprio 1")
    a.label("L_at_p1")
    if PM == "time": a("s_memtime s[30:31]")
    lq = Q(a, "lgkmcnt")
    lq.q = [("K", 1), ("K", 1), ("V", -1), ("V", -1), ("V", -1), ("V", -1)]
    def check(tag):
        a("s_nop 0")
        a(f"v_add_f32 v{t}, v{vD}, v{vD+1}")
        a(f"v_cmp_nge_f32 vcc, s{sThr}, v{t}")
        a(f"s_cbranch_vccnz L_at_rare{tag}")
        a.label(f"L_at_back{tag}")
        a(f"v_add_f32 v{vLA}, v{vLA}, v{vD}")
        a(f"v_add_f32 v{vLB}, v{vLB}, v{vD+1}")
    for b in range(4):
        sb = b & 1
        sm = softmax_part(sb)
        q1, q2 = qk(sb ^ 1, sb ^ 1)
        p1, p2 = pv(sb ^ 1)
        s1, s2 = summ(sb)
        krs = kr(sb, b + 2)
        vrs = v_reads(sb, b)
        ins = {1: [("r", krs[0], ("K", b + 2))], 2: [("r", krs[1], ("K", b + 2))],
               4: [("w", ("K", b + 1)), ("c", b), q1], 6: [("w", ("V", b - 1)), p1], 8: [q2],
               9: [("r", vrs[0], ("V", b))], 10: [("r", vrs[1], ("V", b))], 11: [s1],
               12: [p2], 13: [("r", vrs[2], ("V", b))], 14: [("r", vrs[3], ("V", b))]}
        e = 0
        for x in sm:
            if x.startswith("v_exp"):
                for y in ins.get(e, []):
                    if isinstance(y, tuple):
                        if y[0] == "w": lq.wait({y[1]})
                        elif y[0] == "c": check(b)
                        else: lq.issue(y[1], y[2])
                    else: a(y)
                e += 1
            a(x)
        a("s_nop 1")
        a(s2)
        if b == 1:
            a("s_waitcnt vmcnt(0) lgkmcnt(0)")
            lq.q = []
            a("s_barrier")
            a(f"s_cmp_le_u32 s{sCnt}, 2")
            a("s_cbranch_scc1 L_at_nodma")
            for x in dma(): a(x)
            a.label("L_at_nodma")
    assert lq.q == [("K", 5)] * 2 + [("V", 3)] * 4, lq.q
    a(f"""
    v_mov_b32 v{vKa}, v{vKn}
    v_mov_b32 v{vKa2}, v{vKn2}
    v_add_u32 v{vVa}, s{sSlot}, v{vVb}
    s_add_u32 s{sSlot}, s{sSlot}, 8192
    s_cmp_eq_u32 s{sSlot}, 24576
    s_cselect_b32 s{sSlot}, 0, s{sSlot}
    v_add_u32 v{vKn}, s{sSlot}, v{vKb}
    v_xor_b32 v{vKn2}, 32, v{vKn}
    s_sub_u32 s{sCnt}, s{sCnt}, 1
    s_cmp_lg_u32 s{sCnt}, 0
    s_cbranch_scc1 L_at_loop
    s_branch L_at_epi
    """)
    for b in (0, 1, 2, 3, "e"):
        sb = 0 if b == "e" else (b & 1)
        Sc, Sp = vS[sb], vS[sb ^ 1]
        a.label(f"L_at_rare{b}")
        rowmax(Sp)
        a(f"""
        v_max_f32 v{t}, 0, v{t}
        v_exp_f32 v{t+1}, -v{t}
        v_sub_f32 v{vNM}, v{vNM}, v{t}
        """)
        for r in range(1, 16): a(f"v_mov_b32 v{vNM+r}, v{vNM}")
        a(f"""
        v_mov_b32 v{t+2}, v{t+1}
        v_mov_b32 v{t+3}, v{t+1}
        s_nop 1
        v_permlane16_swap_b32 v{t+2}, v{t+3}
        s_nop 7
        v_mul_f32 v{vLA}, v{vLA}, v{t+1}
        v_mul_f32 v{vLB}, v{vLB}, v{t+3}
        """)
        for r in range(16): a(f"v_mul_f32 v{vO+r}, v{vO+r}, v{t+1}")
        for r in range(16):
            a(f"v_sub_f32 v{Sp+r}, v{Sp+r}, v{t}")
            if b != "e": a(f"v_sub_f32 v{Sc+r}, v{Sc+r}, v{t}")
        for x in softmax_part(sb ^ 1): a(x)
        a("s_nop 1")
        for x in summ(sb ^ 1): a(x)
        if b != "e":
            for x in softmax_part(sb, 4): a(x)
        a("s_nop 7\ns_nop 3")
        a(f"s_branch L_at_back{b}")
    a.label("L_at_epi")
    a("s_waitcnt lgkmcnt(0)\ns_nop 7")
    check("e")
    for x in pv(1): a(x)
    stampv(a, 159)
    vPk = vPk2[0]
    a(f"""
    s_nop 1
    v_permlane16_swap_b32 v{vLA}, v{vLB}
    s_nop 1
    v_mov_b32 v{t}, v{vLA}
    s_nop 1
    v_permlane32_swap_b32 v{t}, v{vLA}
    s_nop 1
    v_rcp_f32 v{t}, v{t}
    s_nop 7
    s_nop 7
    """)
    for r in range(16): a(f"v_mul_f32 v{vO+r}, v{vO+r}, v{t}")
    for r in range(8): a(f"v_cvt_pk_bf16_f32 v{vPk+r}, v{vO+2*r}, v{vO+2*r+1}")
    a("s_nop 1")
    for k in range(2):
        a(f"v_permlane32_swap_b32 v{vPk+4*k}, v{vPk+4*k+2}")
        a(f"v_permlane32_swap_b32 v{vPk+4*k+1}, v{vPk+4*k+3}")
    a(f"s_mov_b32 s{T+6}, {WS_AF}")
    for k in range(2):
        a(f"buffer_store_dwordx4 {vr(vPk+4*k,4)}, v7, {sr(sWs,4)}, s{T+6} offen offset:{512*k} sc1")
    a(f"""
    s_lshl_b32 s{T+10}, s{sQB}, 7
    s_lshl_b32 s{T+11}, s{sH}, 2
    s_add_u32 s{T+10}, s{T+10}, s{T+11}
    s_add_u32 s{T+10}, s{T+10}, {WS_CNT}
    v_mov_b32 v{t}, s{T+10}
    v_mov_b32 v{t+1}, 1
    s_waitcnt vmcnt(0) lgkmcnt(0)
    s_barrier
    s_cmp_lg_u32 s{sW}, 0
    s_cbranch_scc1 L_at_nosig
    s_mov_b64 exec, 1
    global_store_dword v{t}, v{t+1}, s[{T}:{T+1}] sc1
    s_mov_b64 exec, -1
    """)
    a.label("L_at_nosig")
    stamp_end(a, 158, 159, sW, "at", 32, 2)
    a("s_endpgm")

NST1 = 56
NST = 56
dAcc = 8
NAS = 4
dA = 72
dW = [136, 152]
dAo = 0
dBg = 2
dWa = 4
dsAF = 8; dsB = 12; dsX = 16; dsO = 24; dCnt = 21; dOffA = 22; dOffB = 23; dM0 = 28; dsWo = 30; dsDbg = 32; dMask = 34; dBit = 35

def dn_role(a):
    T = sT
    sMT, sNT = T + 2, T + 3
    a("v_mov_b32 v72, v2")
    a(f"""
    s_load_dwordx2 s[{T+4}:{T+5}], s[0:1], {KA_WD}
    s_load_dwordx2 s[{T+6}:{T+7}], s[0:1], {KA_X}
    s_load_dwordx2 s[{T+12}:{T+13}], s[0:1], {KA_WO}
    s_load_dwordx2 s[{T+14}:{T+15}], s[0:1], {KA_OUT}
    s_load_dwordx2 s[{dsDbg}:{dsDbg+1}], s[0:1], {KA_DBG}
    s_and_b32 s{T+8}, s{sW}, 1
    s_lshr_b32 s{T+9}, s{sW}, 1
    s_lshl_b32 s{T+10}, s{sMT}, 3
    s_lshl_b32 s{T+11}, s{T+8}, 2
    s_add_u32 s{T+10}, s{T+10}, s{T+11}
    s_mul_i32 s{T+11}, s{T+10}, 147456
    s_add_u32 s{T+11}, s{T+11}, {WS_AF}
    s_add_u32 s{dsAF}, s{T}, s{T+11}
    s_addc_u32 s{dsAF+1}, s{T+1}, 0
    s_and_b32 s{dsAF+1}, s{dsAF+1}, 0xffff
    s_mov_b32 s{dsAF+2}, {4*147456}
    s_mov_b32 s{dsAF+3}, 0x20000
    s_lshl_b32 s{dOffA}, s{T+9}, 10
    s_add_u32 s{dOffA}, s{dOffA}, {32*1024}
    v_and_b32 v73, 31, v72
    v_lshrrev_b32 v74, 5, v72
    v_lshrrev_b32 v75, 4, v73
    s_mov_b32 s{T+11}, 147456
    v_mul_lo_u32 v75, v75, s{T+11}
    v_and_b32 v76, 15, v73
    v_lshl_add_u32 v76, v74, 4, v76
    v_lshl_add_u32 v{dAo}, v76, 4, v75
    v_add_u32 v{dAo+1}, {2*147456}, v{dAo}
    s_waitcnt lgkmcnt(0)
    s_lshl_b32 s{T+11}, s{sNT}, 7
    s_add_u32 s{dsB}, s{T+4}, s{T+11}
    s_addc_u32 s{dsB+1}, s{T+5}, 0
    s_and_b32 s{dsB+1}, s{dsB+1}, 0xffff
    s_sub_u32 s{dsB+2}, {3584*2048}, s{T+11}
    s_mov_b32 s{dsB+3}, 0x20000
    s_add_u32 s{dsWo}, s{T+12}, s{T+11}
    s_addc_u32 s{dsWo+1}, s{T+13}, 0
    s_and_b32 s{dsWo+1}, s{dsWo+1}, 0xffff
    s_mov_b32 s{dOffB}, 0
    s_lshl_b32 s{dM0}, s{sW}, 11
    s_mov_b32 s{dsX}, s{T+6}
    s_and_b32 s{dsX+1}, s{T+7}, 0xffff
    s_mov_b32 s{dsX+2}, 0x400000
    s_mov_b32 s{dsX+3}, 0x20000
    s_mov_b32 s{dsO}, s{T+14}
    s_and_b32 s{dsO+1}, s{T+15}, 0xffff
    s_mov_b32 s{dsO+2}, 0x400000
    s_mov_b32 s{dsO+3}, 0x20000
    """)
    sMH, sKH = T + 8, T + 9
    a(f"""
    v_lshrrev_b32 v75, 3, v72
    v_bfe_u32 v76, v72, 4, 1
    v_lshlrev_b32 v76, 2, v76
    v_and_b32 v77, 7, v72
    v_xor_b32 v76, v76, v77
    s_lshl_b32 s{T+11}, s{sW}, 4
    v_add_u32 v75, s{T+11}, v75
    v_lshlrev_b32 v75, 11, v75
    v_lshl_add_u32 v{dBg}, v76, 4, v75
    v_add_u32 v{dBg+1}, {8*2048}, v{dBg}
    v_bfe_u32 v75, v72, 2, 2
    v_lshl_add_u32 v75, v74, 3, v75
    s_lshl_b32 s{T+11}, s{sKH}, 5
    v_add_u32 v75, s{T+11}, v75
    v_lshlrev_b32 v75, 7, v75
    v_bfe_u32 v76, v72, 4, 1
    v_lshl_add_u32 v75, v76, 5, v75
    v_and_b32 v76, 3, v72
    v_lshl_add_u32 v75, v76, 3, v75
    v_bfe_u32 v76, v72, 3, 1
    v_lshl_add_u32 v{dWa}, v76, 6, v75
    v_xor_b32 v{dWa+1}, 64, v{dWa}
    """)
    vq = Q(a, "vmcnt")
    def b_dma(t):
        slot = t % 4
        L = []
        if t == NST1:
            L.append((f"s_mov_b32 s{dsB}, s{dsWo}\ns_mov_b32 s{dsB+1}, s{dsWo+1}\ns_lshl_b32 s{T+11}, s{sNT}, 7\ns_sub_u32 s{dsB+2}, {1024*2048}, s{T+11}\ns_mov_b32 s{dOffB}, 0", None))
        L += [(f"s_add_u32 m0, s{dM0}, {8192*slot}", None),
                (f"buffer_load_dwordx4 v{dBg}, {sr(dsB,4)}, s{dOffB} offen lds\ns_add_u32 m0, m0, 0x400", ("B", t)),
                (f"buffer_load_dwordx4 v{dBg+1}, {sr(dsB,4)}, s{dOffB} offen lds\ns_add_u32 s{dOffB}, s{dOffB}, {64*2048}", ("B", t))]
        return L
    def a_ld(t):
        slot = t % NAS
        L = []
        sc = " sc1" if t >= NST1 else ""
        for i in range(2):
            for s in range(2):
                x = f"buffer_load_dwordx4 {vr(dA+16*slot+(i*2+s)*4,4)}, v{dAo+i}, {sr(dsAF,4)}, s{dOffA} offen offset:{512*s}{sc}"
                if i == 1 and s == 1: x += f"\ns_add_u32 s{dOffA}, s{dOffA}, 2048"
                L.append((x, ("A", t)))
        return L
    def w_rd(t):
        slot = t % 4; fs = t & 1
        L = []
        for s in range(2):
            for j in range(2):
                b = dW[fs] + (j * 2 + s) * 4
                off = 8192 * slot + 16 * s * 128
                L.append((f"ds_read_b64_tr_b16 {vr(b,2)}, v{dWa+j} offset:{off}", None))
                L.append((f"ds_read_b64_tr_b16 {vr(b+2,2)}, v{dWa+j} offset:{off+512}", None))
        return L
    def emit(it):
        if it[1] is None: a(it[0])
        else: vq.issue(it[0], it[1])
    if os.environ.get('DN_XFIRST', '1') == '1':
        pass
    a(f"""
    v_mbcnt_lo_u32_b32 v152, -1, 0
    v_mbcnt_hi_u32_b32 v152, -1, v152
    v_and_b32 v153, 31, v152
    v_lshrrev_b32 v154, 5, v152
    s_lshl_b32 s{T+11}, s{sMT}, 7
    s_lshl_b32 s{T+12}, s{sMH}, 6
    s_add_u32 s{T+11}, s{T+11}, s{T+12}
    v_add_u32 v155, s{T+11}, v153
    v_lshlrev_b32 v155, 11, v155
    s_lshl_b32 s{T+11}, s{sNT}, 7
    s_lshl_b32 s{T+12}, s{sKH}, 6
    s_add_u32 s{T+11}, s{T+11}, s{T+12}
    v_add_u32 v155, s{T+11}, v155
    v_lshl_add_u32 v155, v154, 3, v155
    s_mov_b32 s{T+11}, {32*2048}
    """)
    for i in range(2):
        for aa in range(4):
            so = "0" if i == 0 else f"s{T+11}"
            vq.issue(f"buffer_load_dwordx2 {vr(136+(i*4+aa)*2,2)}, v155, {sr(dsX,4)}, {so} offen offset:{16*aa}", ("X", 0))
    vq.wait({("X", 0)})
    a(f"s_cmp_eq_u32 s{sKH}, 0\ns_cbranch_scc1 L_dn_x0")
    for kh in (1, 0):
        keep = dAcc + kh * 32; oth = dAcc + (1 - kh) * 32
        for q in range(8):
            a(f"""
            v_lshlrev_b32 v{keep+4*q}, 16, v{136+2*q}
            v_and_b32 v{keep+4*q+1}, 0xffff0000, v{136+2*q}
            v_lshlrev_b32 v{keep+4*q+2}, 16, v{137+2*q}
            v_and_b32 v{keep+4*q+3}, 0xffff0000, v{137+2*q}
            """)
        for r in range(32): a(f"v_mov_b32 v{oth+r}, 0")
        if kh == 1:
            a("s_branch L_dn_x1")
            a.label("L_dn_x0")
    a.label("L_dn_x1")
    for t in range(3):
        for it in b_dma(t):
            emit(it); a("s_nop 0")
        for it in a_ld(t): emit(it)
    if os.environ.get("DN_PF", "0") == "1":
        a(f"""
        s_and_b32 s{T+11}, s{sMT}, 3
        s_lshl_b32 s{T+11}, s{T+11}, 2
        s_add_u32 s{T+11}, s{T+11}, s{sW}
        s_lshl_b32 s{T+11}, s{T+11}, 17
        v_mbcnt_lo_u32_b32 v6, -1, 0
        v_mbcnt_hi_u32_b32 v6, -1, v6
        v_lshlrev_b32 v6, 11, v6
        v_add_u32 v6, s{T+11}, v6
        s_mov_b32 s36, s{dsWo}
        s_mov_b32 s37, s{dsWo+1}
        s_lshl_b32 s{T+12}, s{sNT}, 7
        s_sub_u32 s38, {1024*2048}, s{T+12}
        s_mov_b32 s39, 0x20000
        """)
        a(f"s_mov_b32 s33, {16*64*2048}")
    a(f"s_setprio {os.environ.get('DN_PRIO', '0')}")
    vq.wait({("B", 0)})
    a("s_barrier")
    for it in w_rd(0): emit(it)
    def step(t, rt, first=False):
        vq.wait({("A", t), ("B", t + 1)})
        a("s_waitcnt lgkmcnt(0)")
        if rt + 1 < NST: a("s_barrier")
        fills = []
        if rt + 1 < NST: fills += w_rd(t + 1)
        if rt + 3 < NST: fills += b_dma(t + 3)
        late = []
        if rt + 3 < NST:
            if rt + 3 >= NST1: late = a_ld(t + 3)
            else: fills += a_ld(t + 3)
        m = []
        fs = t & 1; slot = t % NAS
        for s in range(2):
            for j in range(2):
                for i in range(2):
                    c = dAcc + (j * 2 + i) * 16
                    cc = vr(c, 16)
                    m.append((f"v_mfma_f32_32x32x16_bf16 {vr(c,16)}, {vr(dW[fs]+(j*2+s)*4,4)}, {vr(dA+16*slot+(i*2+s)*4,4)}, {cc}", None))
        if os.environ.get("DN_PF", "0") == "1":
            if rt in (4, 8):
                fills.append((f"buffer_load_dword v7, v6, {sr(dsB,4)}, s33 offen\ns_add_u32 s33, s33, {16*64*2048}", ("P", t)))
            if rt == 44:
                fills.append((f"buffer_load_dword v7, v6, s[36:39], 0 offen", ("P", t)))
        for it in interleave(m, fills, 0, 8): emit(it)
    for t in range(8): step(t, t, first=(t == 0))
    a(f"s_mov_b32 s{dCnt}, 3")
    a.label("L_dn_loop")
    q0 = list(vq.q)
    for t in range(8, 20): step(t, t)
    assert q0 == [(x, y - 12) for (x, y) in vq.q]
    a(f"""
    s_sub_u32 s{dCnt}, s{dCnt}, 1
    s_cmp_lg_u32 s{dCnt}, 0
    s_cbranch_scc1 L_dn_loop
    """)
    vq.q = [(x, y + 24) for (x, y) in vq.q]
    for t in range(44, NST): step(t, t)
    if STAMPS: a("s_memtime s[36:37]\ns_waitcnt lgkmcnt(0)")
    a(f"s_setprio {os.environ.get('DN_OPRIO', '3')}")
    a(f"""
    s_barrier
    v_mbcnt_lo_u32_b32 v6, -1, 0
    v_mbcnt_hi_u32_b32 v6, -1, v6
    v_and_b32 v6, 31, v6
    v_lshlrev_b32 v6, 2, v6
    s_lshl_b32 s{T+11}, s{sMT}, 7
    s_add_u32 s{T+11}, s{T+11}, {WS_CNT}
    v_add_u32 v6, s{T+11}, v6
    s_mov_b32 s{T+12}, 0x40000
    s_mov_b32 s{dMask}, 0
    s_mov_b32 s{dBit}, 0x55555555
    s_lshl_b32 s{dBit}, s{dBit}, s{sKH}
    s_mov_b32 s{dsB}, s{dsWo}
    s_mov_b32 s{dsB+1}, s{dsWo+1}
    s_lshl_b32 s{T+11}, s{sNT}, 7
    s_sub_u32 s{dsB+2}, {1024*2048}, s{T+11}
    s_mul_i32 s{dM0}, s{sW}, 12288
    s_lshl_b32 s{T+11}, s{sKH}, 12
    s_sub_u32 s{T+11}, s{dM0}, s{T+11}
    v_add_u32 v{dWa}, s{T+11}, v{dWa}
    v_add_u32 v{dWa+1}, s{T+11}, v{dWa+1}
    s_lshl_b32 s{T+11}, s{sW}, 15
    v_subrev_u32 v{dBg}, s{T+11}, v{dBg}
    v_subrev_u32 v{dBg+1}, s{T+11}, v{dBg+1}
    """)
    vq.q = []
    for q in range(18):
        if q >= 2:
            vq.wait({("O", q - 2)})
            for s_ in range(2):
                for j in range(2):
                    b = dW[q & 1] + (j * 2 + s_) * 4
                    off = 4096 * ((q - 2) % 3) + 16 * s_ * 128
                    a(f"ds_read_b64_tr_b16 {vr(b,2)}, v{dWa+j} offset:{off}")
                    a(f"ds_read_b64_tr_b16 {vr(b+2,2)}, v{dWa+j} offset:{off+512}")
        if q < 16:
            a(f"""
            s_and_b32 s{T+11}, s{dMask}, s{dBit}
            s_cbranch_scc1 L_dn_go{q}
            """)
            a.label(f"L_dn_poll{q}")
            a(f"""
            global_load_dword v7, v6, s[{T}:{T+1}] sc1
            s_waitcnt vmcnt(0)
            v_cmp_ne_u32 vcc, 0, v7
            s_nop 3
            s_mov_b32 s{dMask}, vcc_lo
            s_sub_u32 s{T+12}, s{T+12}, 1
            s_cmp_eq_u32 s{T+12}, 0
            s_cselect_b32 s{dMask}, -1, s{dMask}
            s_and_b32 s{T+11}, s{dMask}, s{dBit}
            s_cbranch_scc1 L_dn_go{q}
            s_sleep {os.environ.get('DN_SLEEP', '6')}
            s_branch L_dn_poll{q}
            """)
            a.label(f"L_dn_go{q}")
            a(f"""
            s_ff1_i32_b32 s{T+11}, s{T+11}
            s_bitset0_b32 s{dBit}, s{T+11}
            s_lshl_b32 s{dOffA}, s{T+11}, 10
            s_lshl_b32 s{dOffB}, s{T+11}, 16
            s_add_u32 m0, s{dM0}, {4096*(q%3)}
            s_add_u32 s{T+13}, s{dOffB}, {16*2048}
            """)
            for i in range(2):
                for s_ in range(2):
                    vq.issue(f"buffer_load_dwordx4 {vr(dA+16*(q%4)+(i*2+s_)*4,4)}, v{dAo+i}, {sr(dsAF,4)}, s{dOffA} offen offset:{512*s_} sc1", ("O", q))
            for k_ in range(4):
                so = dOffB if k_ < 2 else T + 13
                vq.issue(f"buffer_load_dwordx4 v{dBg+(k_&1)}, {sr(dsB,4)}, s{so} offen lds\ns_add_u32 m0, m0, 0x400\ns_nop 0", ("O", q))
        if q >= 2:
            a("s_waitcnt lgkmcnt(0)")
            for s_ in range(2):
                for j in range(2):
                    for i in range(2):
                        c = dAcc + (j * 2 + i) * 16
                        a(f"v_mfma_f32_32x32x16_bf16 {vr(c,16)}, {vr(dW[q&1]+(j*2+s_)*4,4)}, {vr(dA+16*((q-2)%4)+(i*2+s_)*4,4)}, {vr(c,16)}")
    vx = 72
    a(f"""
    v_mbcnt_lo_u32_b32 v2, -1, 0
    v_mbcnt_hi_u32_b32 v2, -1, v2
    v_and_b32 v3, 31, v2
    v_lshrrev_b32 v4, 5, v2
    s_lshl_b32 s{T+11}, s{sMT}, 7
    s_lshl_b32 s{T+12}, s{sMH}, 6
    s_add_u32 s{T+11}, s{T+11}, s{T+12}
    v_add_u32 v6, s{T+11}, v3
    v_lshlrev_b32 v6, 11, v6
    s_lshl_b32 s{T+11}, s{sNT}, 7
    s_lshl_b32 s{T+12}, s{sKH}, 6
    s_add_u32 s{T+11}, s{T+11}, s{T+12}
    v_add_u32 v6, s{T+11}, v6
    v_lshl_add_u32 v7, v4, 4, v6
    v_lshl_add_u32 v6, v4, 3, v6
    s_mov_b32 s{T+11}, {32*2048}
    """)
    a(f"""
    s_nop 7
    s_barrier
    s_lshl_b32 s{T+12}, s{sW}, 13
    s_xor_b32 s{T+13}, s{T+12}, 16384
    v_lshlrev_b32 v5, 4, v2
    v_add_u32 v{dAo}, s{T+13}, v5
    v_add_u32 v5, s{T+12}, v5
    s_cmp_eq_u32 s{sKH}, 0
    s_cbranch_scc1 L_dn_k0
    """)
    vp = 104
    for kh in (1, 0):
        keep = dAcc + kh * 32
        send = dAcc + (1 - kh) * 32
        for q in range(8):
            a(f"ds_write_b128 v{dAo}, {vr(send+4*q,4)} offset:{1024*q}")
        a("s_waitcnt lgkmcnt(0)\ns_barrier")
        for q in range(8):
            a(f"ds_read_b128 {vr(vp+4*q,4)}, v5 offset:{1024*q}")
        a("s_waitcnt vmcnt(0) lgkmcnt(0)")
        for q in range(8):
            x0 = vx + 2 * q; c = keep + 4 * q; p = vp + 4 * q
            a(f"""
            v_add_f32 v{c}, v{c}, v{p}
            v_add_f32 v{c+1}, v{c+1}, v{p+1}
            v_add_f32 v{c+2}, v{c+2}, v{p+2}
            v_add_f32 v{c+3}, v{c+3}, v{p+3}
            v_cvt_pk_bf16_f32 v{136+2*q}, v{c}, v{c+1}
            v_cvt_pk_bf16_f32 v{137+2*q}, v{c+2}, v{c+3}
            """)
        a("s_nop 1")
        for i in range(2):
            for k in range(2):
                b = 136 + 8 * i + 4 * k
                a(f"v_permlane32_swap_b32 v{b}, v{b+2}")
                a(f"v_permlane32_swap_b32 v{b+1}, v{b+3}")
        for i in range(2):
            for k in range(2):
                b = 136 + 8 * i + 4 * k
                so = "0" if i == 0 else f"s{T+11}"
                a(f"buffer_store_dwordx4 {vr(b,4)}, v7, {sr(dsO,4)}, {so} offen offset:{32*k}")
        if STAMPS: a("v_mov_b32 v3, s36\nv_mov_b32 v4, s96")
        stamp_end(a, 4, 3, sW, f"dn{kh}", 72, 2)
        a("s_endpgm")
        if kh == 1: a.label("L_dn_k0")

def gen_mid(a, name="mid_kernel"):
    kernel_header(a, name)
    T = sT
    stamp0(a)
    a(f"""
    s_setprio 3
    s_cmp_ge_u32 s2, {GRID}
    s_cbranch_scc1 L_mid_done
    s_load_dwordx2 s[{T}:{T+1}], s[0:1], {KA_WS}
    v_lshrrev_b32 v1, 6, v0
    v_and_b32 v2, 63, v0
    s_nop 0
    v_readfirstlane_b32 s{sW}, v1
    s_and_b32 s{T+4}, s2, 7
    s_lshr_b32 s{T+5}, s2, 3
    s_mov_b32 s{T+6}, 0x55555556
    s_mul_hi_u32 s{T+6}, s{T+5}, s{T+6}
    s_mul_i32 s{T+7}, s{T+6}, 3
    s_sub_u32 s{T+7}, s{T+5}, s{T+7}
    s_waitcnt lgkmcnt(0)
    s_cmp_eq_u32 s{T+7}, 2
    s_cbranch_scc1 L_mid_dn
    s_mov_b32 s28, s{T+7}
    s_lshr_b32 s29, s2, 8
    s_cmp_eq_u32 s29, 1
    s_cselect_b32 s{T+8}, 1, 0
    s_cmp_eq_u32 s28, 0
    s_cselect_b32 s{T+8}, s{T+8}, 0
    s_cmp_eq_u32 s29, 2
    s_cselect_b32 s29, 1, s{T+8}
    s_lshl_b32 s{T+6}, s{T+6}, 1
    s_add_u32 s{T+6}, s{T+6}, s{T+7}
    s_lshl_b32 s{T+2}, s{T+4}, 2
    s_and_b32 s{T+7}, s{T+6}, 3
    s_add_u32 s{T+2}, s{T+2}, s{T+7}
    s_lshr_b32 s{T+3}, s{T+6}, 2
    """)
    if 'dnonly' in EXPT: a("s_endpgm")
    attn_role(a)
    a.label("L_mid_dn")
    if 'atonly' in EXPT: a("s_endpgm")
    a(f"""
    s_lshr_b32 s{T+2}, s{T+4}, 1
    s_lshl_b32 s{T+2}, s{T+2}, 2
    s_and_b32 s{T+7}, s{T+6}, 3
    s_add_u32 s{T+2}, s{T+2}, s{T+7}
    s_and_b32 s{T+3}, s{T+4}, 1
    s_lshl_b32 s{T+3}, s{T+3}, 3
    s_lshr_b32 s{T+7}, s{T+6}, 2
    s_add_u32 s{T+3}, s{T+3}, s{T+7}
    """)
    dn_role(a)
    a.label("L_mid_done")
    a("s_endpgm")
    return descriptor(name, NVGPR, 102)
```

```python
from common import *
from stamps import *
from k_ln import ln_compute
import os

NW = int(os.environ.get("G1_NW", "8"))
MT = 4 if NW == 8 else 8
PD = int(os.environ.get("G1_PD", "3"))
R = PD + 1
STAMPS = os.environ.get("STAMPS", "0") == "1"
ST = os.environ.get("G1_ST", "sc1")
FLN = os.environ.get("G1_FLN", "0") == "1"
ASC = " sc1" if FLN else ""
SP = int(os.environ.get("G1_SP", "0"))
NR = int(os.environ.get("G1_NR", "1"))
SNAKE = os.environ.get("G1_SNAKE", "0") == "1"
AGP = os.environ.get("G1_AGPR", "0") == "1"
LDS_A = [0, 32768]
LDS_B = [65536, 65536 + 40960]
LDS_TOTAL = 147456
BLOCK = NW * 64
NA = 32 // NW
NB = 40 // NW

vXa = 8
vWa = 10
vAg = 20
vBi = 28
vPF = 24
sPF = 32
PFD = int(os.environ.get('G1_PFD', '0'))
vXF = [32, 32 + 4 * MT]
vWF = 32 + 8 * MT
vEnd = vWF + 4 * R
if NW == 8:
    ACCV = 96
    assert vEnd <= ACCV
    NVGPR, ACCUM = 256, (96 if AGP else 256)
else:
    ACCV = 192
    assert vEnd <= ACCV
    NVGPR, ACCUM = 512, 256

def acc(j, i):
    idx = j * MT + i
    if NW == 8:
        if AGP: return f"a[{4*idx}:{4*idx+3}]"
        return f"v[{ACCV+4*idx}:{ACCV+4*idx+3}]"
    if idx < 64:
        return f"a[{4*idx}:{4*idx+3}]"
    return f"v[{ACCV+4*(idx-64)}:{ACCV+4*(idx-64)+3}]"

sA = 8
sB = 12
sOffA = 52
sCnt = 53
sW = 54
sM0A = 56
sM0B = 58
sFlag = 60
sDst = 65
sWs = 4
sT = 70

def w_read(stage, s, j, slot):
    off = (LDS_B[stage] - LDS_B[0]) + (32 * s) * 64
    b = vWF + 4 * slot
    return [f"ds_read_b64_tr_b16 {vr(b,2)}, v{vWa+j} offset:{off}",
            f"ds_read_b64_tr_b16 {vr(b+2,2)}, v{vWa+j} offset:{off+256}"]

def x_read(stage, s, i):
    return f"ds_read_b128 {vr(vXF[s]+4*i,4)}, v{vXa+s} offset:{LDS_A[stage]+2048*i}"

def dma(stage, pf=True):
    L = [f"s_mov_b32 m0, s{sM0A+stage}"]
    for j in range(NA):
        L.append(f"buffer_load_dwordx4 v{vAg+j}, {sr(sA,4)}, s{sOffA} offen{ASC} lds\n" +
                 ("s_add_u32 m0, m0, 0x400" if j < NA - 1 else f"s_mov_b32 m0, s{sM0B+stage}"))
    for i in range(NB):
        L.append(f"buffer_load_dwordx4 {vr(vBi,2)}, {sr(sB+4*i,4)}, 0 idxen offen lds\n" +
                 "s_add_u32 m0, m0, 0x1000")
    L.append(f"s_add_u32 s{sOffA}, s{sOffA}, 128\nv_add_u32 v{vBi}, 64, v{vBi}")
    if PFD and pf:
        L.append(f"buffer_load_dword v26, {vr(vPF,2)}, {sr(sPF,4)}, 0 idxen offen\nv_add_u32 v{vPF}, 64, v{vPF}")
    return L

class Sched:
    def __init__(self, a):
        self.a = a
        self.q = []
    def issue(self, instr, tag):
        self.a(instr); self.q.append(tag)
    def wait(self, tags):
        last = -1
        for i, t in enumerate(self.q):
            if t in tags: last = i
        if last >= 0:
            n = len(self.q) - 1 - last
            assert n <= 15
            self.a(f"s_waitcnt lgkmcnt({n})")
            self.q = self.q[last + 1:]
    def drain(self):
        self.a("s_waitcnt lgkmcnt(0)"); self.q = []

def group(sc, t, s, j, fills, first=False):
    a = sc.a
    n = (t * 20 + s * 10 + j)
    slot = n % R
    sc.wait({("W", n), ("X", t, s)})
    m = []
    order = list(range(MT))
    if SNAKE and (j & 1): order = order[::-1]
    for i in order:
        c = "0" if first else acc(j, i)
        m.append(f"v_mfma_f32_16x16x32_bf16 {acc(j,i)}, {vr(vWF+4*slot,4)}, {vr(vXF[s]+4*i,4)}, {c}")
    seq = interleave([(x, "M") for x in m], fills, 0, MT)
    for ins, tag in seq:
        if tag == "M" or tag is None:
            a(ins)
        else:
            sc.issue(ins, tag)

def wfill(n):
    t, r = divmod(n, 20)
    s, j = divmod(r, 10)
    return [(x, ("W", n)) for x in w_read(t & 1, s, j, n % R)]

def phase(a, t, lead=True, do_dma=True, tail=True, first=False):
    sc = Sched(a)
    order = []
    if lead:
        order += [(t, 1, j) for j in range(10 - PD, 10)]
    if tail:
        order += [(t + 1, 0, j) for j in range(10)] + [(t + 1, 1, j) for j in range(10 - PD)]
    fills = {g: [] for g in order}
    tn = t + 1
    if tail:
        xr = [(x_read(tn & 1, 0, i), ("X", tn, 0)) for i in range(MT)]
        if lead:
            for k, g in enumerate(order[:PD]):
                fills[g] += wfill(tn * 20 + k)
                lo = (MT * k) // PD; hi = (MT * (k + 1)) // PD
                fills[g] += xr[lo:hi]
        else:
            for ins, tag in xr: sc.issue(ins, tag)
            for k in range(PD):
                for ins, tag in wfill(tn * 20 + k): sc.issue(ins, tag)
        for (tt, s, j) in order:
            if tt == tn:
                n = tn * 20 + s * 10 + j
                if s * 10 + j + PD < 20:
                    fills[(tt, s, j)] += wfill(n + PD)
        xr1 = [(x_read(tn & 1, 1, i), ("X", tn, 1)) for i in range(MT)]
        for i in range(MT):
            fills[(tn, 0, 1 + (i * 8) // MT)].append(xr1[i])
    if do_dma:
        d = dma(t & 1)
        ng = min(len(order), 10)
        for k, x in enumerate(d):
            fills[order[(k * ng) // len(d)]].append((x, None))
    for g in order:
        group(sc, g[0], g[1], g[2], fills[g], first=(first and g[1] == 0))
    return sc

def barrier(a, pf=True):
    a(f"s_waitcnt vmcnt({1 if (pf and PFD) else 0}) lgkmcnt(0)")
    a("s_barrier")

def gen_gemm1(a, name="gemm1_kernel"):
    kernel_header(a, name)
    T = sT
    stamp0(a)
    a(f"""
    s_cmp_ge_u32 s2, 256
    s_cbranch_scc1 L_g1_done
    s_load_dwordx2 s[{T}:{T+1}], s[0:1], {KA_WQKV}
    s_load_dwordx2 s[{T+2}:{T+3}], s[0:1], {KA_WG}
    s_load_dwordx2 s[{T+4}:{T+5}], s[0:1], {KA_WU}
    s_load_dwordx2 s[{T+6}:{T+7}], s[0:1], {KA_WS}
    s_load_dwordx2 s[36:37], s[0:1], {KA_X}
    s_load_dwordx2 s[40:41], s[0:1], {KA_DBG}
    v_lshrrev_b32 v1, 6, v0
    v_and_b32 v2, 63, v0
    s_nop 0
    v_readfirstlane_b32 s{sW}, v1
    s_and_b32 s{T+8}, s2, 7
    s_lshr_b32 s{T+9}, s2, 3
    s_and_b32 s{T+10}, s{T+9}, 7
    s_lshr_b32 s{T+9}, s{T+9}, 3
    s_lshl_b32 s{T+8}, s{T+8}, 2
    s_add_u32 s{T+9}, s{T+9}, s{T+8}
    """)
    sRT, sCT = T + 10, T + 9
    sNGU, sUB, sCB = T + 11, T + 12, T + 13
    a(f"""
    s_cmp_eq_u32 s{sCT}, 9
    s_cselect_b32 s{sNGU}, 2, 5
    s_cselect_b32 s{sUB}, 6, 0
    s_mul_i32 s{sCB}, s{sCT}, 160
    s_sub_u32 s{sCB}, s{sCB}, {1600-64}
    s_cmp_eq_u32 s{sCT}, 9
    s_cselect_b32 s{sCB}, 0, s{sCB}
    s_waitcnt lgkmcnt(0)
    s_mov_b32 s{sWs}, s{T+6}
    s_and_b32 s{sWs+1}, s{T+7}, 0xffff
    s_mov_b32 s{sWs+2}, {WS_BYTES}
    s_mov_b32 s{sWs+3}, 0x20000
    s_lshl_b32 s{T+14}, s{sRT}, 19
    s_add_u32 s{sA}, s{T+6}, s{T+14}
    s_addc_u32 s{sA+1}, s{T+7}, 0
    s_and_b32 s{sA+1}, s{sA+1}, 0xffff
    s_sub_u32 s{sA+2}, 0x400000, s{T+14}
    s_mov_b32 s{sA+3}, 0x20000
    s_mov_b32 s{sOffA}, 0
    """)
    LO = 92
    if FLN:
        a(f"""
        s_and_b32 s37, s37, 0xffff
        s_mov_b32 s38, 0x400000
        s_mov_b32 s39, 0x20000
        s_lshr_b32 s42, s2, 3
        s_and_b32 s43, s42, {NR-1}
        s_lshr_b32 s42, s42, {NR.bit_length()-1}
        s_lshl_b32 s42, s42, 3
        s_and_b32 s{T+14}, s2, 7
        s_add_u32 s42, s42, s{T+14}
        s_lshl_b32 s{T+14}, s42, 3
        s_add_u32 s{T+14}, s{T+14}, s{sW}
        s_lshl_b32 s{T+14}, s{T+14}, {11 + NR.bit_length()-1}
        v_lshlrev_b32 v{LO+1}, 4, v2
        v_add_u32 v{LO+1}, s{T+14}, v{LO+1}
        v_add_u32 v{LO+2}, 4096, v{LO+1}
        s_cmp_lg_u32 s43, 0
        s_cbranch_scc1 L_g1_nox
        """)
        for r in range(NR):
            o = LO + 40 * r
            a(f"""
            buffer_load_dwordx4 v[{o+4}:{o+7}], v{LO+1+(r>>1)}, s[36:39], 0 offen offset:{2048*(r&1)}
            buffer_load_dwordx4 v[{o+8}:{o+11}], v{LO+1+(r>>1)}, s[36:39], 0 offen offset:{2048*(r&1)+1024}
            """)
        a.label("L_g1_nox")
    a(f"""
    v_lshrrev_b32 v3, 3, v2
    v_lshrrev_b32 v4, 4, v2
    v_and_b32 v5, 7, v2
    s_mul_i32 s{T+14}, s{sW}, {8*NA}
    """)
    for j in range(NA):
        a(f"""
        v_add_u32 v6, {4*j}, v4
        v_and_b32 v6, 7, v6
        v_xor_b32 v6, v6, v5
        v_add_u32 v7, {8*j}, v3
        v_add_u32 v7, s{T+14}, v7
        v_lshlrev_b32 v7, 11, v7
        v_lshl_add_u32 v{vAg+j}, v6, 4, v7
        """)
    sKQ, sU0 = T + 14, T + 15
    a(f"""
    s_and_b32 s{sKQ}, s{sW}, 3
    s_lshr_b32 s{sU0}, s{sW}, 2
    s_mul_i32 s{sU0}, s{sU0}, 5
    s_lshl_b32 s{T+16}, s{sKQ}, 4
    v_lshrrev_b32 v3, 2, v2
    v_add_u32 v{vBi}, s{T+16}, v3
    v_and_b32 v4, 3, v2
    v_lshrrev_b32 v5, 5, v2
    v_lshlrev_b32 v5, 1, v5
    v_xor_b32 v4, v4, v5
    v_lshlrev_b32 v{vBi+1}, 4, v4
    s_mul_i32 s{T+16}, s{sCT}, 10
    """)
    def build_srd(b, uexpr):
        u, gu, ur, col, strd = [T + 17 + x for x in range(5)]
        a(uexpr.replace("DST", f"s{u}"))
        a(f"""
        s_add_u32 s{gu}, s{T+16}, s{u}
        s_sub_u32 s{ur}, s{u}, s{sUB}
        s_sub_u32 s{col}, s{ur}, s{sNGU}
        s_cmp_ge_u32 s{ur}, s{sNGU}
        s_cselect_b32 s{ur}, s{col}, s{ur}
        s_cselect_b32 s{b}, s{T+4}, s{T+2}
        s_cselect_b32 s{b+1}, s{T+5}, s{T+3}
        s_lshl_b32 s{col}, s{ur}, 5
        s_add_u32 s{col}, s{col}, s{sCB}
        s_lshl_b32 s{col}, s{col}, 1
        s_lshl_b32 s{ur}, s{gu}, 6
        s_cmp_lt_u32 s{gu}, 96
        s_cselect_b32 s{col}, s{ur}, s{col}
        s_cselect_b32 s{b}, s{T}, s{b}
        s_cselect_b32 s{b+1}, s{T+1}, s{b+1}
        s_cselect_b32 s{strd}, 6, 7
        s_lshl_b32 s{strd}, s{strd}, 26
        s_add_u32 s{b}, s{b}, s{col}
        s_addc_u32 s{b+1}, s{b+1}, 0
        s_and_b32 s{b+1}, s{b+1}, 0xffff
        s_or_b32 s{b+1}, s{b+1}, s{strd}
        s_mov_b32 s{b+2}, 1024
        s_mov_b32 s{b+3}, 0x20000
        """)
    a(f"""
    s_mul_i32 s{sM0A}, s{sW}, {NA*1024}
    s_add_u32 s{sM0A+1}, s{sM0A}, {LDS_A[1]}
    s_lshl_b32 s{sM0B}, s{sU0}, 12
    s_lshl_b32 s{T+16}, s{sKQ}, 10
    s_add_u32 s{sM0B}, s{sM0B}, s{T+16}
    s_add_u32 s{sM0B+1}, s{sM0B}, {LDS_B[1]}
    s_add_u32 s{sM0B}, s{sM0B}, {LDS_B[0]}
    """)
    def dmaA(st):
        a(f"s_mov_b32 m0, s{sM0A+st}\ns_nop 0")
        for j in range(NA):
            a(f"buffer_load_dwordx4 v{vAg+j}, {sr(sA,4)}, s{sOffA} offen{ASC} lds\ns_add_u32 m0, m0, 0x400\ns_nop 0")
        a(f"s_add_u32 s{sOffA}, s{sOffA}, 128")
    def dmaB(st):
        a(f"s_mov_b32 m0, s{sM0B+st}\ns_nop 0")
        for i in range(NB):
            a(f"buffer_load_dwordx4 {vr(vBi,2)}, {sr(sB+4*i,4)}, 0 idxen offen lds\ns_add_u32 m0, m0, 0x1000\ns_nop 0")
        a(f"v_add_u32 v{vBi}, 64, v{vBi}")
    a(f"s_mul_i32 s{T+16}, s{sCT}, 10")
    if not FLN: dmaA(0)
    for i in range(NB):
        build_srd(sB + 4 * i, f"s_add_u32 DST, s{sU0}, {i}")
        if not FLN:
            a(f"s_add_u32 m0, s{sM0B}, {0x1000*i}\ns_nop 0")
            a(f"buffer_load_dwordx4 {vr(vBi,2)}, {sr(sB+4*i,4)}, 0 idxen offen lds")
    if not FLN:
        a(f"v_add_u32 v{vBi}, 64, v{vBi}")
        dmaA(1)
        dmaB(1)
    if PFD:
        a(f"""
        s_mul_i32 s{T+16}, s{sCT}, 10
        s_lshl_b32 s{T+14}, s{sW}, 3
        s_add_u32 s{T+14}, s{T+14}, s{sRT}
        """)
        build_srd(sPF, f"s_min_u32 DST, s{T+14}, 9")
        a(f"""
        s_cmp_lt_u32 s{T+14}, 10
        s_cselect_b32 s{sPF+2}, 1024, 0
        v_add_u32 v{vPF}, 128, v2
        v_mov_b32 v{vPF+1}, 0
        """)
        for k in range(PFD - 2):
            a(f"buffer_load_dword v26, {vr(vPF,2)}, {sr(sPF,4)}, 0 idxen offen\nv_add_u32 v{vPF}, 64, v{vPF}")
    sWM, sWN = T + 14, T + 15
    WMN = NW // 2
    a(f"""
    s_and_b32 s{sWM}, s{sW}, {WMN-1}
    s_lshr_b32 s{sWN}, s{sW}, {1 if WMN == 2 else 2}
    v_and_b32 v3, 15, v2
    v_lshrrev_b32 v4, 4, v2
    v_lshrrev_b32 v5, 1, v3
    s_mul_i32 s{T+16}, s{sWM}, {16*MT}
    v_add_u32 v6, s{T+16}, v3
    v_lshlrev_b32 v6, 7, v6
    """)
    for s in range(2):
        a(f"""
        v_add_u32 v7, {4*s}, v4
        v_xor_b32 v7, v7, v5
        v_lshl_add_u32 v{vXa+s}, v7, 4, v6
        """)
    a(f"""
    v_lshrrev_b32 v5, 2, v2
    v_and_b32 v5, 3, v5
    v_lshl_add_u32 v5, v4, 3, v5
    v_lshlrev_b32 v5, 6, v5
    v_and_b32 v6, 3, v2
    v_lshl_add_u32 v5, v6, 3, v5
    v_add_u32 v5, {LDS_B[0]}, v5
    v_and_b32 v6, 1, v4
    v_lshlrev_b32 v6, 5, v6
    s_mul_i32 s{T+16}, s{sCT}, 10
    s_mul_i32 s{T+17}, s{sWN}, 5
    """)
    for j in range(5):
        t, gu, tp, lo, hi, h, x = [T + 18 + k for k in range(7)]
        a(f"""
        s_add_u32 s{t}, s{T+17}, {j}
        s_add_u32 s{gu}, s{T+16}, s{t}
        s_sub_u32 s{tp}, s{t}, s{sUB}
        s_and_b32 s{h}, s{tp}, 1
        s_lshr_b32 s{x}, s{tp}, 1
        s_add_u32 s{x}, s{x}, s{sUB}
        s_lshl_b32 s{lo}, s{x}, 12
        s_add_u32 s{x}, s{x}, s{sNGU}
        s_lshl_b32 s{hi}, s{x}, 12
        s_lshl_b32 s{x}, s{h}, 5
        s_add_u32 s{lo}, s{lo}, s{x}
        s_add_u32 s{hi}, s{hi}, s{x}
        s_lshl_b32 s{x}, s{tp}, 4
        s_add_u32 s{x}, s{x}, s{sCB}
        s_lshr_b32 s{sDst+j}, s{x}, 5
        s_lshl_b32 s{sDst+j}, s{sDst+j}, 10
        s_and_b32 s{x}, s{x}, 16
        s_lshl_b32 s{x}, s{x}, 5
        s_add_u32 s{sDst+j}, s{sDst+j}, s{x}
        s_add_u32 s{sDst+j}, s{sDst+j}, {WS_AF + 32*1024}
        s_lshl_b32 s{x}, s{gu}, 17
        s_add_u32 s{x}, s{x}, {WS_QKV}
        s_lshl_b32 s{t}, s{t}, 12
        s_add_u32 s{h}, s{t}, 32
        s_cmp_lt_u32 s{gu}, 32
        s_cselect_b32 s{sFlag+j}, 2, 1
        s_cmp_lt_u32 s{gu}, 96
        s_cselect_b32 s{sFlag+j}, s{sFlag+j}, 0
        s_cselect_b32 s{sDst+j}, s{x}, s{sDst+j}
        s_cselect_b32 s{lo}, s{t}, s{lo}
        s_cselect_b32 s{hi}, s{h}, s{hi}
        v_xor_b32 v7, s{lo}, v6
        v_add_u32 v{vWa+2*j}, v7, v5
        v_xor_b32 v7, s{hi}, v6
        v_add_u32 v{vWa+2*j+1}, v7, v5
        """)
    if FLN:
        a("s_cmp_lg_u32 s43, 0\ns_cbranch_scc1 L_g1_noln\ns_waitcnt vmcnt(0)")
        for r in range(NR):
            o = LO + 40 * r
            ln_compute(a, o, T + 17)
            a(f"""
            buffer_store_dwordx4 v[{o+4}:{o+7}], v{LO+1+(r>>1)}, {sr(sWs,4)}, 0 offen offset:{2048*(r&1)} sc1
            buffer_store_dwordx4 v[{o+8}:{o+11}], v{LO+1+(r>>1)}, {sr(sWs,4)}, 0 offen offset:{2048*(r&1)+1024} sc1
            """)
        a.label("L_g1_noln")
        if SP == 1: stampv(a, 30)
        dmaB(0); dmaB(1)
        a(f"""
        s_waitcnt vmcnt({2*NB})
        s_barrier""")
        if SP == 2: stampv(a, 30)
        a(f"""
        s_cmp_lg_u32 s{sW}, 0
        s_cbranch_scc1 L_g1_flagok
        s_cmp_lg_u32 s43, 0
        s_cbranch_scc1 L_g1_nozero
        s_lshr_b32 s42, s42, {5-(NR.bit_length()-1)}
        s_lshl_b32 s42, s42, 5
        v_mov_b32 v{LO}, s42
        v_mov_b32 v{LO+1}, 1
        s_mov_b64 exec, 1
        global_atomic_add v{LO}, v{LO+1}, s[40:41] sc1
        s_mov_b64 exec, -1
        s_cmp_lg_u32 s2, 0
        s_cbranch_scc1 L_g1_nozero
        v_lshlrev_b32 v{LO}, 5, v2
        v_add_u32 v{LO}, {WS_CNT}, v{LO}
        v_mov_b32 v{LO+4}, 0
        v_mov_b32 v{LO+5}, 0
        v_mov_b32 v{LO+6}, 0
        v_mov_b32 v{LO+7}, 0
        buffer_store_dwordx4 v[{LO+4}:{LO+7}], v{LO}, {sr(sWs,4)}, 0 offen
        buffer_store_dwordx4 v[{LO+4}:{LO+7}], v{LO}, {sr(sWs,4)}, 0 offen offset:16
        """)
        a.label("L_g1_nozero")
        a(f"""
        s_lshl_b32 s{T+16}, s{sRT}, 5
        v_mov_b32 v{LO}, s{T+16}
        s_mov_b32 s{T+16}, 0x40000
        s_mov_b32 s{T+17}, {32//NR}
        """)
        a.label("L_g1_poll")
        a(f"""
        s_sleep {os.environ.get("G1_SLEEP", "16")}
        global_load_dword v{LO+1}, v{LO}, s[40:41] sc1
        s_waitcnt vmcnt(0)
        v_cmp_ne_u32 vcc, s{T+17}, v{LO+1}
        s_cbranch_vccz L_g1_flagok
        s_sub_u32 s{T+16}, s{T+16}, 1
        s_cmp_eq_u32 s{T+16}, 0
        s_cbranch_scc1 L_g1_flagok
        s_branch L_g1_poll
        """)
        a.label("L_g1_flagok")
        a("s_barrier")
        if SP == 3: stampv(a, 30)
        dmaA(0); dmaA(1)
        a(f"s_waitcnt vmcnt({NA})")
        a("s_barrier")
    else:
        a(f"s_waitcnt vmcnt({NA+NB+(PFD-2 if PFD else 0)})")
        a("s_barrier")
    if SP == 0: stampv(a, 30)
    phase(a, -1, lead=False, do_dma=False, first=True)
    a(f"s_waitcnt vmcnt({0 if FLN else (PFD-2 if PFD else 0)}) lgkmcnt(0)\ns_barrier")
    a(f"s_mov_b32 s{sCnt}, 7")
    a.label("L_g1_loop")
    phase(a, 0)
    barrier(a)
    phase(a, 1)
    barrier(a)
    a(f"""
    s_sub_u32 s{sCnt}, s{sCnt}, 1
    s_cmp_lg_u32 s{sCnt}, 0
    s_cbranch_scc1 L_g1_loop
    """)
    phase(a, 14, do_dma=False)
    a("s_waitcnt lgkmcnt(0)")
    phase(a, 15, do_dma=False, tail=False)
    stampv(a, 31)
    a(f"""
    s_lshl_b32 s{T+16}, s{sRT}, 8
    s_mul_i32 s{T+17}, s{sWM}, {16*MT}
    s_add_u32 s{T+16}, s{T+16}, s{T+17}
    v_add_u32 v5, s{T+16}, v3
    v_lshlrev_b32 v6, 6, v5
    v_lshl_add_u32 v6, v4, 4, v6
    v_lshrrev_b32 v7, 1, v4
    s_lshr_b32 s{T+16}, s{T+16}, 4
    v_add_u32 v7, s{T+16}, v7
    s_mov_b32 s{T+17}, {144*1024}
    v_mul_lo_u32 v7, v7, s{T+17}
    v_and_b32 v5, 1, v4
    v_lshl_add_u32 v5, v5, 4, v3
    v_lshl_add_u32 v7, v5, 4, v7
    s_mov_b32 s{T+18}, 0xbfb8aa3b
    s_nop 7
    """)
    tmpA = 32
    def accregs(j, i, tmp):
        s = acc(j, i)
        lo = int(s[2:s.index(":")])
        if s[0] == "v":
            return lo
        for r in range(4):
            a(f"v_accvgpr_read_b32 v{tmp+r}, a{lo+r}")
        return tmp
    for j in range(5):
        a(f"""
        s_cmp_eq_u32 s{sFlag+j}, 0
        s_cbranch_scc1 L_g1_eg{j}
        s_cmp_eq_u32 s{sFlag+j}, 2
        s_cselect_b32 s{T+19}, 0x3e8293ee, 1.0
        """)
        for i in range(MT):
            p = 64 + 4 * (i & 3)
            c0 = accregs(2 * j, i, 32)
            c1 = accregs(2 * j + 1, i, 36)
            for r in range(4):
                a(f"v_mul_f32 v{c0+r}, s{T+19}, v{c0+r}")
                a(f"v_mul_f32 v{c1+r}, s{T+19}, v{c1+r}")
            a(f"""
            v_cvt_pk_bf16_f32 v{p}, v{c0}, v{c0+1}
            v_cvt_pk_bf16_f32 v{p+1}, v{c0+2}, v{c0+3}
            v_cvt_pk_bf16_f32 v{p+2}, v{c1}, v{c1+1}
            v_cvt_pk_bf16_f32 v{p+3}, v{c1+2}, v{c1+3}
            s_nop 1
            v_permlane32_swap_b32 v{p}, v{p+2}
            v_permlane32_swap_b32 v{p+1}, v{p+3}
            s_nop 1
            v_permlane16_swap_b32 v{p}, v{p+2}
            v_permlane16_swap_b32 v{p+1}, v{p+3}
            """)
            off = 1024 * i
            if off >= 4096:
                if off % 4096 == 0:
                    a(f"s_add_u32 s{sDst+j}, s{sDst+j}, 4096")
                off %= 4096
            a(f"buffer_store_dwordx4 {vr(p,4)}, v6, {sr(sWs,4)}, s{sDst+j} offen offset:{off} {ST}")
        a(f"s_branch L_g1_en{j}")
        a.label(f"L_g1_eg{j}")
        for i2 in range(MT // 2):
            p = 64 + 4 * (i2 & 3)
            t = 48
            regs = []
            for k in range(2):
                g = accregs(2 * j, 2 * i2 + k, 32 + 8 * k)
                u = accregs(2 * j + 1, 2 * i2 + k, 36 + 8 * k)
                regs += [(g + r, u + r) for r in range(4)]
            for r in range(8): a(f"v_mul_f32 v{t+r}, s{T+18}, v{regs[r][0]}")
            for r in range(8): a(f"v_exp_f32 v{t+r}, v{t+r}")
            for r in range(8): a(f"v_add_f32 v{t+r}, 1.0, v{t+r}")
            for r in range(8): a(f"v_rcp_f32 v{t+r}, v{t+r}")
            for r in range(8): a(f"v_mul_f32 v{t+8+r}, v{regs[r][0]}, v{regs[r][1]}")
            for r in range(8): a(f"v_mul_f32 v{t+r}, v{t+r}, v{t+8+r}")
            for r in range(4): a(f"v_cvt_pk_bf16_f32 v{p+r}, v{t+2*r}, v{t+2*r+1}")
            a(f"""
            s_nop 1
            v_permlane32_swap_b32 v{p}, v{p+2}
            v_permlane32_swap_b32 v{p+1}, v{p+3}
            s_nop 1
            v_permlane16_swap_b32 v{p}, v{p+2}
            v_permlane16_swap_b32 v{p+1}, v{p+3}
            """)
            if i2 > 0:
                a(f"s_add_u32 s{sDst+j}, s{sDst+j}, {2*144*1024}")
            a(f"buffer_store_dwordx4 {vr(p,4)}, v7, {sr(sWs,4)}, s{sDst+j} offen {ST}")
        a.label(f"L_g1_en{j}")
        a("s_nop 1")
    stamp_end(a, 30, 31, sW, "g1", 32, 1)
    a.label("L_g1_done")
    a("s_endpgm")
    return descriptor(name, NVGPR, 102, ACCUM)
```

```python
from common import *
from stamps import *
from k_ln import ln_compute
import os

NW = int(os.environ.get("G1_NW", "8"))
MT = 4 if NW == 8 else 8
PD = int(os.environ.get("G1_PD", "3"))
R = PD + 1
STAMPS = os.environ.get("STAMPS", "0") == "1"
ST = os.environ.get("G1_ST", "sc1")
FLN = os.environ.get("G1_FLN", "0") == "1"
ASC = " sc1" if FLN else ""
SP = int(os.environ.get("G1_SP", "0"))
NR = int(os.environ.get("G1_NR", "1"))
SNAKE = os.environ.get("G1_SNAKE", "0") == "1"
AGP = os.environ.get("G1_AGPR", "0") == "1"
LDS_A = [0, 32768]
LDS_B = [65536, 65536 + 40960]
LDS_TOTAL = 147456
BLOCK = NW * 64
NA = 32 // NW
NB = 40 // NW

vXa = 8
vWa = 10
vAg = 20
vBi = 28
vPF = 24
sPF = 32
PFD = int(os.environ.get('G1_PFD', '3'))
vXF = [32, 32 + 4 * MT]
vWF = 32 + 8 * MT
vEnd = vWF + 4 * R
if NW == 8:
    ACCV = 96
    assert vEnd <= ACCV
    NVGPR, ACCUM = 256, (96 if AGP else 256)
else:
    ACCV = 192
    assert vEnd <= ACCV
    NVGPR, ACCUM = 512, 256

def acc(j, i):
    idx = j * MT + i
    if NW == 8:
        if AGP: return f"a[{4*idx}:{4*idx+3}]"
        return f"v[{ACCV+4*idx}:{ACCV+4*idx+3}]"
    if idx < 64:
        return f"a[{4*idx}:{4*idx+3}]"
    return f"v[{ACCV+4*(idx-64)}:{ACCV+4*(idx-64)+3}]"

sA = 8
sB = 12
sOffA = 52
sCnt = 53
sW = 54
sM0A = 56
sM0B = 58
sFlag = 60
sDst = 65
sWs = 4
sT = 70

def w_read(stage, s, j, slot):
    off = (LDS_B[stage] - LDS_B[0]) + (32 * s) * 64
    b = vWF + 4 * slot
    return [f"ds_read_b64_tr_b16 {vr(b,2)}, v{vWa+j} offset:{off}",
            f"ds_read_b64_tr_b16 {vr(b+2,2)}, v{vWa+j} offset:{off+256}"]

def x_read(stage, s, i):
    return f"ds_read_b128 {vr(vXF[s]+4*i,4)}, v{vXa+s} offset:{LDS_A[stage]+2048*i}"

def dma(stage, pf=True):
    L = [f"s_mov_b32 m0, s{sM0A+stage}"]
    for j in range(NA):
        L.append(f"buffer_load_dwordx4 v{vAg+j}, {sr(sA,4)}, s{sOffA} offen{ASC} lds\n" +
                 ("s_add_u32 m0, m0, 0x400" if j < NA - 1 else f"s_mov_b32 m0, s{sM0B+stage}"))
    for i in range(NB):
        L.append(f"buffer_load_dwordx4 {vr(vBi,2)}, {sr(sB+4*i,4)}, 0 idxen offen lds\n" +
                 "s_add_u32 m0, m0, 0x1000")
    L.append(f"s_add_u32 s{sOffA}, s{sOffA}, 128\nv_add_u32 v{vBi}, 64, v{vBi}")
    if PFD and pf:
        L.append(f"buffer_load_dword v26, {vr(vPF,2)}, {sr(sPF,4)}, 0 idxen offen\nv_add_u32 v{vPF}, 64, v{vPF}")
    return L

class Sched:
    def __init__(self, a):
        self.a = a
        self.q = []
    def issue(self, instr, tag):
        self.a(instr); self.q.append(tag)
    def wait(self, tags):
        last = -1
        for i, t in enumerate(self.q):
            if t in tags: last = i
        if last >= 0:
            n = len(self.q) - 1 - last
            assert n <= 15
            self.a(f"s_waitcnt lgkmcnt({n})")
            self.q = self.q[last + 1:]
    def drain(self):
        self.a("s_waitcnt lgkmcnt(0)"); self.q = []

def group(sc, t, s, j, fills, first=False):
    a = sc.a
    n = (t * 20 + s * 10 + j)
    slot = n % R
    sc.wait({("W", n), ("X", t, s)})
    m = []
    order = list(range(MT))
    if SNAKE and (j & 1): order = order[::-1]
    for i in order:
        c = "0" if first else acc(j, i)
        m.append(f"v_mfma_f32_16x16x32_bf16 {acc(j,i)}, {vr(vWF+4*slot,4)}, {vr(vXF[s]+4*i,4)}, {c}")
    seq = interleave([(x, "M") for x in m], fills, 0, MT)
    for ins, tag in seq:
        if tag == "M" or tag is None:
            a(ins)
        else:
            sc.issue(ins, tag)

def wfill(n):
    t, r = divmod(n, 20)
    s, j = divmod(r, 10)
    return [(x, ("W", n)) for x in w_read(t & 1, s, j, n % R)]

def phase(a, t, lead=True, do_dma=True, tail=True, first=False):
    sc = Sched(a)
    order = []
    if lead:
        order += [(t, 1, j) for j in range(10 - PD, 10)]
    if tail:
        order += [(t + 1, 0, j) for j in range(10)] + [(t + 1, 1, j) for j in range(10 - PD)]
    fills = {g: [] for g in order}
    tn = t + 1
    if tail:
        xr = [(x_read(tn & 1, 0, i), ("X", tn, 0)) for i in range(MT)]
        if lead:
            for k, g in enumerate(order[:PD]):
                fills[g] += wfill(tn * 20 + k)
                lo = (MT * k) // PD; hi = (MT * (k + 1)) // PD
                fills[g] += xr[lo:hi]
        else:
            for ins, tag in xr: sc.issue(ins, tag)
            for k in range(PD):
                for ins, tag in wfill(tn * 20 + k): sc.issue(ins, tag)
        for (tt, s, j) in order:
            if tt == tn:
                n = tn * 20 + s * 10 + j
                if s * 10 + j + PD < 20:
                    fills[(tt, s, j)] += wfill(n + PD)
        xr1 = [(x_read(tn & 1, 1, i), ("X", tn, 1)) for i in range(MT)]
        for i in range(MT):
            fills[(tn, 0, 1 + (i * 8) // MT)].append(xr1[i])
    if do_dma:
        d = dma(t & 1)
        ng = min(len(order), 10)
        for k, x in enumerate(d):
            fills[order[(k * ng) // len(d)]].append((x, None))
    for g in order:
        group(sc, g[0], g[1], g[2], fills[g], first=(first and g[1] == 0))
    return sc

def barrier(a, pf=True):
    a(f"s_waitcnt vmcnt({1 if (pf and PFD) else 0}) lgkmcnt(0)")
    a("s_barrier")

def gen_gemm1(a, name="gemm1_kernel"):
    kernel_header(a, name)
    T = sT
    stamp0(a)
    a(f"""
    s_cmp_ge_u32 s2, 256
    s_cbranch_scc1 L_g1_done
    s_load_dwordx2 s[{T}:{T+1}], s[0:1], {KA_WQKV}
    s_load_dwordx2 s[{T+2}:{T+3}], s[0:1], {KA_WG}
    s_load_dwordx2 s[{T+4}:{T+5}], s[0:1], {KA_WU}
    s_load_dwordx2 s[{T+6}:{T+7}], s[0:1], {KA_WS}
    s_load_dwordx2 s[36:37], s[0:1], {KA_X}
    s_load_dwordx2 s[40:41], s[0:1], {KA_DBG}
    s_load_dwordx2 s[44:45], s[0:1], {KA_WD}
    s_load_dwordx2 s[46:47], s[0:1], {KA_WO}
    v_lshrrev_b32 v1, 6, v0
    v_and_b32 v2, 63, v0
    s_nop 0
    v_readfirstlane_b32 s{sW}, v1
    s_and_b32 s{T+8}, s2, 7
    s_lshr_b32 s{T+9}, s2, 3
    s_and_b32 s{T+10}, s{T+9}, 7
    s_lshr_b32 s{T+9}, s{T+9}, 3
    s_lshl_b32 s{T+8}, s{T+8}, 2
    s_add_u32 s{T+9}, s{T+9}, s{T+8}
    """)
    sRT, sCT = T + 10, T + 9
    sNGU, sUB, sCB = T + 11, T + 12, T + 13
    a(f"""
    s_cmp_eq_u32 s{sCT}, 9
    s_cselect_b32 s{sNGU}, 2, 5
    s_cselect_b32 s{sUB}, 6, 0
    s_mul_i32 s{sCB}, s{sCT}, 160
    s_sub_u32 s{sCB}, s{sCB}, {1600-64}
    s_cmp_eq_u32 s{sCT}, 9
    s_cselect_b32 s{sCB}, 0, s{sCB}
    s_waitcnt lgkmcnt(0)
    s_mov_b32 s{sWs}, s{T+6}
    s_and_b32 s{sWs+1}, s{T+7}, 0xffff
    s_mov_b32 s{sWs+2}, {WS_BYTES}
    s_mov_b32 s{sWs+3}, 0x20000
    s_lshl_b32 s{T+14}, s{sRT}, 19
    s_add_u32 s{sA}, s{T+6}, s{T+14}
    s_addc_u32 s{sA+1}, s{T+7}, 0
    s_and_b32 s{sA+1}, s{sA+1}, 0xffff
    s_sub_u32 s{sA+2}, 0x400000, s{T+14}
    s_mov_b32 s{sA+3}, 0x20000
    s_mov_b32 s{sOffA}, 0
    """)
    LO = 92
    if FLN:
        a(f"""
        s_and_b32 s37, s37, 0xffff
        s_mov_b32 s38, 0x400000
        s_mov_b32 s39, 0x20000
        s_lshr_b32 s42, s2, 3
        s_and_b32 s43, s42, {NR-1}
        s_lshr_b32 s42, s42, {NR.bit_length()-1}
        s_lshl_b32 s42, s42, 3
        s_and_b32 s{T+14}, s2, 7
        s_add_u32 s42, s42, s{T+14}
        s_lshl_b32 s{T+14}, s42, 3
        s_add_u32 s{T+14}, s{T+14}, s{sW}
        s_lshl_b32 s{T+14}, s{T+14}, {11 + NR.bit_length()-1}
        v_lshlrev_b32 v{LO+1}, 4, v2
        v_add_u32 v{LO+1}, s{T+14}, v{LO+1}
        v_add_u32 v{LO+2}, 4096, v{LO+1}
        s_cmp_lg_u32 s43, 0
        s_cbranch_scc1 L_g1_nox
        """)
        for r in range(NR):
            o = LO + 40 * r
            a(f"""
            buffer_load_dwordx4 v[{o+4}:{o+7}], v{LO+1+(r>>1)}, s[36:39], 0 offen offset:{2048*(r&1)}
            buffer_load_dwordx4 v[{o+8}:{o+11}], v{LO+1+(r>>1)}, s[36:39], 0 offen offset:{2048*(r&1)+1024}
            """)
        a.label("L_g1_nox")
    a(f"""
    v_lshrrev_b32 v3, 3, v2
    v_lshrrev_b32 v4, 4, v2
    v_and_b32 v5, 7, v2
    s_mul_i32 s{T+14}, s{sW}, {8*NA}
    """)
    for j in range(NA):
        a(f"""
        v_add_u32 v6, {4*j}, v4
        v_and_b32 v6, 7, v6
        v_xor_b32 v6, v6, v5
        v_add_u32 v7, {8*j}, v3
        v_add_u32 v7, s{T+14}, v7
        v_lshlrev_b32 v7, 11, v7
        v_lshl_add_u32 v{vAg+j}, v6, 4, v7
        """)
    sKQ, sU0 = T + 14, T + 15
    a(f"""
    s_and_b32 s{sKQ}, s{sW}, 3
    s_lshr_b32 s{sU0}, s{sW}, 2
    s_mul_i32 s{sU0}, s{sU0}, 5
    s_lshl_b32 s{T+16}, s{sKQ}, 4
    v_lshrrev_b32 v3, 2, v2
    v_add_u32 v{vBi}, s{T+16}, v3
    v_and_b32 v4, 3, v2
    v_lshrrev_b32 v5, 5, v2
    v_lshlrev_b32 v5, 1, v5
    v_xor_b32 v4, v4, v5
    v_lshlrev_b32 v{vBi+1}, 4, v4
    s_mul_i32 s{T+16}, s{sCT}, 10
    """)
    def build_srd(b, uexpr):
        u, gu, ur, col, strd = [T + 17 + x for x in range(5)]
        a(uexpr.replace("DST", f"s{u}"))
        a(f"""
        s_add_u32 s{gu}, s{T+16}, s{u}
        s_sub_u32 s{ur}, s{u}, s{sUB}
        s_sub_u32 s{col}, s{ur}, s{sNGU}
        s_cmp_ge_u32 s{ur}, s{sNGU}
        s_cselect_b32 s{ur}, s{col}, s{ur}
        s_cselect_b32 s{b}, s{T+4}, s{T+2}
        s_cselect_b32 s{b+1}, s{T+5}, s{T+3}
        s_lshl_b32 s{col}, s{ur}, 5
        s_add_u32 s{col}, s{col}, s{sCB}
        s_lshl_b32 s{col}, s{col}, 1
        s_lshl_b32 s{ur}, s{gu}, 6
        s_cmp_lt_u32 s{gu}, 96
        s_cselect_b32 s{col}, s{ur}, s{col}
        s_cselect_b32 s{b}, s{T}, s{b}
        s_cselect_b32 s{b+1}, s{T+1}, s{b+1}
        s_cselect_b32 s{strd}, 6, 7
        s_lshl_b32 s{strd}, s{strd}, 26
        s_add_u32 s{b}, s{b}, s{col}
        s_addc_u32 s{b+1}, s{b+1}, 0
        s_and_b32 s{b+1}, s{b+1}, 0xffff
        s_or_b32 s{b+1}, s{b+1}, s{strd}
        s_mov_b32 s{b+2}, 1024
        s_mov_b32 s{b+3}, 0x20000
        """)
    a(f"""
    s_mul_i32 s{sM0A}, s{sW}, {NA*1024}
    s_add_u32 s{sM0A+1}, s{sM0A}, {LDS_A[1]}
    s_lshl_b32 s{sM0B}, s{sU0}, 12
    s_lshl_b32 s{T+16}, s{sKQ}, 10
    s_add_u32 s{sM0B}, s{sM0B}, s{T+16}
    s_add_u32 s{sM0B+1}, s{sM0B}, {LDS_B[1]}
    s_add_u32 s{sM0B}, s{sM0B}, {LDS_B[0]}
    """)
    def dmaA(st):
        a(f"s_mov_b32 m0, s{sM0A+st}\ns_nop 0")
        for j in range(NA):
            a(f"buffer_load_dwordx4 v{vAg+j}, {sr(sA,4)}, s{sOffA} offen{ASC} lds\ns_add_u32 m0, m0, 0x400\ns_nop 0")
        a(f"s_add_u32 s{sOffA}, s{sOffA}, 128")
    def dmaB(st):
        a(f"s_mov_b32 m0, s{sM0B+st}\ns_nop 0")
        for i in range(NB):
            a(f"buffer_load_dwordx4 {vr(vBi,2)}, {sr(sB+4*i,4)}, 0 idxen offen lds\ns_add_u32 m0, m0, 0x1000\ns_nop 0")
        a(f"v_add_u32 v{vBi}, 64, v{vBi}")
    a(f"s_mul_i32 s{T+16}, s{sCT}, 10")
    if not FLN: dmaA(0)
    for i in range(NB):
        build_srd(sB + 4 * i, f"s_add_u32 DST, s{sU0}, {i}")
        if not FLN:
            a(f"s_add_u32 m0, s{sM0B}, {0x1000*i}\ns_nop 0")
            a(f"buffer_load_dwordx4 {vr(vBi,2)}, {sr(sB+4*i,4)}, 0 idxen offen lds")
    if not FLN:
        a(f"v_add_u32 v{vBi}, 64, v{vBi}")
        dmaA(1)
        dmaB(1)
    if PFD:
        a(f"""
        s_mul_i32 s{T+16}, s{sCT}, 10
        s_lshl_b32 s{T+14}, s{sW}, 3
        s_add_u32 s{T+14}, s{T+14}, s{sRT}
        """)
        build_srd(sPF, f"s_min_u32 DST, s{T+14}, 9")
        a(f"""
        s_cmp_lt_u32 s{T+14}, 10
        s_cselect_b32 s{sPF+2}, 1024, 0
        v_add_u32 v{vPF}, 128, v2
        v_mov_b32 v{vPF+1}, 0
        """)
        if os.environ.get("G1_PFW", "1") == "1":
            a(f"""
            s_cmp_lt_u32 s{sW}, 2
            s_cbranch_scc1 L_g1_nopfw
            s_cmp_gt_u32 s{sW}, 3
            s_cbranch_scc1 L_g1_nopfw
            s_mul_i32 s{T+14}, s2, {224*128}
            s_lshl_b32 s{T+17}, s2, 13
            s_cmp_eq_u32 s{sW}, 2
            s_cselect_b32 s{sPF}, s44, s46
            s_cselect_b32 s{sPF+1}, s45, s47
            s_cselect_b32 s{T+14}, s{T+14}, s{T+17}
            s_cselect_b32 s{sPF+2}, 224, 64
            s_add_u32 s{sPF}, s{sPF}, s{T+14}
            s_addc_u32 s{sPF+1}, s{sPF+1}, 0
            s_and_b32 s{sPF+1}, s{sPF+1}, 0xffff
            s_or_b32 s{sPF+1}, s{sPF+1}, {128 << 16}
            v_subrev_u32 v{vPF}, {int(os.environ.get("G1_PFW0", "256"))}, v2
            """)
            a.label("L_g1_nopfw")
        for k in range(PFD - 2):
            a(f"buffer_load_dword v26, {vr(vPF,2)}, {sr(sPF,4)}, 0 idxen offen\nv_add_u32 v{vPF}, 64, v{vPF}")
    sWM, sWN = T + 14, T + 15
    WMN = NW // 2
    a(f"""
    s_and_b32 s{sWM}, s{sW}, {WMN-1}
    s_lshr_b32 s{sWN}, s{sW}, {1 if WMN == 2 else 2}
    v_and_b32 v3, 15, v2
    v_lshrrev_b32 v4, 4, v2
    v_lshrrev_b32 v5, 1, v3
    s_mul_i32 s{T+16}, s{sWM}, {16*MT}
    v_add_u32 v6, s{T+16}, v3
    v_lshlrev_b32 v6, 7, v6
    """)
    for s in range(2):
        a(f"""
        v_add_u32 v7, {4*s}, v4
        v_xor_b32 v7, v7, v5
        v_lshl_add_u32 v{vXa+s}, v7, 4, v6
        """)
    a(f"""
    v_lshrrev_b32 v5, 2, v2
    v_and_b32 v5, 3, v5
    v_lshl_add_u32 v5, v4, 3, v5
    v_lshlrev_b32 v5, 6, v5
    v_and_b32 v6, 3, v2
    v_lshl_add_u32 v5, v6, 3, v5
    v_add_u32 v5, {LDS_B[0]}, v5
    v_and_b32 v6, 1, v4
    v_lshlrev_b32 v6, 5, v6
    s_mul_i32 s{T+16}, s{sCT}, 10
    s_mul_i32 s{T+17}, s{sWN}, 5
    """)
    for j in range(5):
        t, gu, tp, lo, hi, h, x = [T + 18 + k for k in range(7)]
        a(f"""
        s_add_u32 s{t}, s{T+17}, {j}
        s_add_u32 s{gu}, s{T+16}, s{t}
        s_sub_u32 s{tp}, s{t}, s{sUB}
        s_and_b32 s{h}, s{tp}, 1
        s_lshr_b32 s{x}, s{tp}, 1
        s_add_u32 s{x}, s{x}, s{sUB}
        s_lshl_b32 s{lo}, s{x}, 12
        s_add_u32 s{x}, s{x}, s{sNGU}
        s_lshl_b32 s{hi}, s{x}, 12
        s_lshl_b32 s{x}, s{h}, 5
        s_add_u32 s{lo}, s{lo}, s{x}
        s_add_u32 s{hi}, s{hi}, s{x}
        s_lshl_b32 s{x}, s{tp}, 4
        s_add_u32 s{x}, s{x}, s{sCB}
        s_lshr_b32 s{sDst+j}, s{x}, 5
        s_lshl_b32 s{sDst+j}, s{sDst+j}, 10
        s_and_b32 s{x}, s{x}, 16
        s_lshl_b32 s{x}, s{x}, 5
        s_add_u32 s{sDst+j}, s{sDst+j}, s{x}
        s_add_u32 s{sDst+j}, s{sDst+j}, {WS_AF + 32*1024}
        s_lshl_b32 s{x}, s{gu}, 17
        s_add_u32 s{x}, s{x}, {WS_QKV}
        s_lshl_b32 s{t}, s{t}, 12
        s_add_u32 s{h}, s{t}, 32
        s_cmp_lt_u32 s{gu}, 32
        s_cselect_b32 s{sFlag+j}, 2, 1
        s_cmp_lt_u32 s{gu}, 96
        s_cselect_b32 s{sFlag+j}, s{sFlag+j}, 0
        s_cselect_b32 s{sDst+j}, s{x}, s{sDst+j}
        s_cselect_b32 s{lo}, s{t}, s{lo}
        s_cselect_b32 s{hi}, s{h}, s{hi}
        v_xor_b32 v7, s{lo}, v6
        v_add_u32 v{vWa+2*j}, v7, v5
        v_xor_b32 v7, s{hi}, v6
        v_add_u32 v{vWa+2*j+1}, v7, v5
        """)
    if FLN:
        a("s_cmp_lg_u32 s43, 0\ns_cbranch_scc1 L_g1_noln\ns_waitcnt vmcnt(0)")
        for r in range(NR):
            o = LO + 40 * r
            ln_compute(a, o, T + 17)
            a(f"""
            buffer_store_dwordx4 v[{o+4}:{o+7}], v{LO+1+(r>>1)}, {sr(sWs,4)}, 0 offen offset:{2048*(r&1)} sc1
            buffer_store_dwordx4 v[{o+8}:{o+11}], v{LO+1+(r>>1)}, {sr(sWs,4)}, 0 offen offset:{2048*(r&1)+1024} sc1
            """)
        a.label("L_g1_noln")
        if SP == 1: stampv(a, 30)
        dmaB(0); dmaB(1)
        a(f"""
        s_waitcnt vmcnt({2*NB})
        s_barrier""")
        if SP == 2: stampv(a, 30)
        a(f"""
        s_cmp_lg_u32 s{sW}, 0
        s_cbranch_scc1 L_g1_flagok
        s_cmp_lg_u32 s43, 0
        s_cbranch_scc1 L_g1_nozero
        s_lshr_b32 s42, s42, {5-(NR.bit_length()-1)}
        s_lshl_b32 s42, s42, 5
        v_mov_b32 v{LO}, s42
        v_mov_b32 v{LO+1}, 1
        s_mov_b64 exec, 1
        global_atomic_add v{LO}, v{LO+1}, s[40:41] sc1
        s_mov_b64 exec, -1
        s_cmp_lg_u32 s2, 0
        s_cbranch_scc1 L_g1_nozero
        v_lshlrev_b32 v{LO}, 5, v2
        v_add_u32 v{LO}, {WS_CNT}, v{LO}
        v_mov_b32 v{LO+4}, 0
        v_mov_b32 v{LO+5}, 0
        v_mov_b32 v{LO+6}, 0
        v_mov_b32 v{LO+7}, 0
        buffer_store_dwordx4 v[{LO+4}:{LO+7}], v{LO}, {sr(sWs,4)}, 0 offen
        buffer_store_dwordx4 v[{LO+4}:{LO+7}], v{LO}, {sr(sWs,4)}, 0 offen offset:16
        """)
        a.label("L_g1_nozero")
        a(f"""
        s_lshl_b32 s{T+16}, s{sRT}, 5
        v_mov_b32 v{LO}, s{T+16}
        s_mov_b32 s{T+16}, 0x40000
        s_mov_b32 s{T+17}, {32//NR}
        """)
        a.label("L_g1_poll")
        a(f"""
        s_sleep {os.environ.get("G1_SLEEP", "16")}
        global_load_dword v{LO+1}, v{LO}, s[40:41] sc1
        s_waitcnt vmcnt(0)
        v_cmp_ne_u32 vcc, s{T+17}, v{LO+1}
        s_cbranch_vccz L_g1_flagok
        s_sub_u32 s{T+16}, s{T+16}, 1
        s_cmp_eq_u32 s{T+16}, 0
        s_cbranch_scc1 L_g1_flagok
        s_branch L_g1_poll
        """)
        a.label("L_g1_flagok")
        a("s_barrier")
        if SP == 3: stampv(a, 30)
        dmaA(0); dmaA(1)
        a(f"s_waitcnt vmcnt({NA})")
        a("s_barrier")
    else:
        a(f"s_waitcnt vmcnt({NA+NB+(PFD-2 if PFD else 0)})")
        a("s_barrier")
    if SP == 0: stampv(a, 30)
    phase(a, -1, lead=False, do_dma=False, first=True)
    a(f"s_waitcnt vmcnt({0 if FLN else (PFD-2 if PFD else 0)}) lgkmcnt(0)\ns_barrier")
    a(f"s_mov_b32 s{sCnt}, 7")
    a.label("L_g1_loop")
    phase(a, 0)
    barrier(a)
    phase(a, 1)
    barrier(a)
    a(f"""
    s_sub_u32 s{sCnt}, s{sCnt}, 1
    s_cmp_lg_u32 s{sCnt}, 0
    s_cbranch_scc1 L_g1_loop
    """)
    phase(a, 14, do_dma=False)
    a("s_waitcnt lgkmcnt(0)")
    phase(a, 15, do_dma=False, tail=False)
    stampv(a, 31)
    a(f"""
    s_lshl_b32 s{T+16}, s{sRT}, 8
    s_mul_i32 s{T+17}, s{sWM}, {16*MT}
    s_add_u32 s{T+16}, s{T+16}, s{T+17}
    v_add_u32 v5, s{T+16}, v3
    v_lshlrev_b32 v6, 6, v5
    v_lshl_add_u32 v6, v4, 4, v6
    v_lshrrev_b32 v7, 1, v4
    s_lshr_b32 s{T+16}, s{T+16}, 4
    v_add_u32 v7, s{T+16}, v7
    s_mov_b32 s{T+17}, {144*1024}
    v_mul_lo_u32 v7, v7, s{T+17}
    v_and_b32 v5, 1, v4
    v_lshl_add_u32 v5, v5, 4, v3
    v_lshl_add_u32 v7, v5, 4, v7
    s_mov_b32 s{T+18}, 0xbfb8aa3b
    s_nop 7
    """)
    tmpA = 32
    def accregs(j, i, tmp):
        s = acc(j, i)
        lo = int(s[2:s.index(":")])
        if s[0] == "v":
            return lo
        for r in range(4):
            a(f"v_accvgpr_read_b32 v{tmp+r}, a{lo+r}")
        return tmp
    for j in range(5):
        a(f"""
        s_cmp_eq_u32 s{sFlag+j}, 0
        s_cbranch_scc1 L_g1_eg{j}
        s_cmp_eq_u32 s{sFlag+j}, 2
        s_cselect_b32 s{T+19}, 0x3e8293ee, 1.0
        """)
        for i in range(MT):
            p = 64 + 4 * (i & 3)
            c0 = accregs(2 * j, i, 32)
            c1 = accregs(2 * j + 1, i, 36)
            for r in range(4):
                a(f"v_mul_f32 v{c0+r}, s{T+19}, v{c0+r}")
                a(f"v_mul_f32 v{c1+r}, s{T+19}, v{c1+r}")
            a(f"""
            v_cvt_pk_bf16_f32 v{p}, v{c0}, v{c0+1}
            v_cvt_pk_bf16_f32 v{p+1}, v{c0+2}, v{c0+3}
            v_cvt_pk_bf16_f32 v{p+2}, v{c1}, v{c1+1}
            v_cvt_pk_bf16_f32 v{p+3}, v{c1+2}, v{c1+3}
            s_nop 1
            v_permlane32_swap_b32 v{p}, v{p+2}
            v_permlane32_swap_b32 v{p+1}, v{p+3}
            s_nop 1
            v_permlane16_swap_b32 v{p}, v{p+2}
            v_permlane16_swap_b32 v{p+1}, v{p+3}
            """)
            off = 1024 * i
            if off >= 4096:
                if off % 4096 == 0:
                    a(f"s_add_u32 s{sDst+j}, s{sDst+j}, 4096")
                off %= 4096
            a(f"buffer_store_dwordx4 {vr(p,4)}, v6, {sr(sWs,4)}, s{sDst+j} offen offset:{off} {ST}")
        a(f"s_branch L_g1_en{j}")
        a.label(f"L_g1_eg{j}")
        for i2 in range(MT // 2):
            p = 64 + 4 * (i2 & 3)
            t = 48
            regs = []
            for k in range(2):
                g = accregs(2 * j, 2 * i2 + k, 32 + 8 * k)
                u = accregs(2 * j + 1, 2 * i2 + k, 36 + 8 * k)
                regs += [(g + r, u + r) for r in range(4)]
            for r in range(8): a(f"v_mul_f32 v{t+r}, s{T+18}, v{regs[r][0]}")
            for r in range(8): a(f"v_exp_f32 v{t+r}, v{t+r}")
            for r in range(8): a(f"v_add_f32 v{t+r}, 1.0, v{t+r}")
            for r in range(8): a(f"v_rcp_f32 v{t+r}, v{t+r}")
            for r in range(8): a(f"v_mul_f32 v{t+8+r}, v{regs[r][0]}, v{regs[r][1]}")
            for r in range(8): a(f"v_mul_f32 v{t+r}, v{t+r}, v{t+8+r}")
            for r in range(4): a(f"v_cvt_pk_bf16_f32 v{p+r}, v{t+2*r}, v{t+2*r+1}")
            a(f"""
            s_nop 1
            v_permlane32_swap_b32 v{p}, v{p+2}
            v_permlane32_swap_b32 v{p+1}, v{p+3}
            s_nop 1
            v_permlane16_swap_b32 v{p}, v{p+2}
            v_permlane16_swap_b32 v{p+1}, v{p+3}
            """)
            if i2 > 0:
                a(f"s_add_u32 s{sDst+j}, s{sDst+j}, {2*144*1024}")
            a(f"buffer_store_dwordx4 {vr(p,4)}, v7, {sr(sWs,4)}, s{sDst+j} offen {ST}")
        a.label(f"L_g1_en{j}")
        a("s_nop 1")
    stamp_end(a, 30, 31, sW, "g1", 32, 1)
    a.label("L_g1_done")
    a("s_endpgm")
    return descriptor(name, NVGPR, 102, ACCUM)
```
